```python
import torch

def _softmax(x, axis=-1):
    return torch.softmax(x, dim=axis)
def _gelu(x):
    return torch.nn.functional.gelu(x, approximate="tanh")
def _silu(x):
    return torch.nn.functional.silu(x)
def _sigmoid(x):
    return torch.sigmoid(x)
def _layernorm(x, axis=-1, eps=1e-5):
    m = x.mean(dim=axis, keepdim=True)
    v = x.var(dim=axis, keepdim=True, unbiased=False)
    return (x - m) / torch.sqrt(v + eps)
def _scatter_add(tgt, idx, src, axis=0):
    return tgt.clone().index_add_(axis, idx, src)
def _segment_sum(src, seg, n):
    out = torch.zeros((n,) + src.shape[1:], dtype=src.dtype)
    return out.index_add_(0, seg, src)
def _pad(x, pw):
    flat = tuple(v for pair in reversed(pw) for v in pair)
    return torch.nn.functional.pad(x, flat)

kernel_name = 'recurrent_scan__gqa_block_cached__glu_gated_geglu__decode'

def setup_inputs():

    _w = (lambda a: (lambda t: t.to(torch.bfloat16) if t.is_floating_point() else t)(torch.as_tensor(a)))
    def _A_setup():
        B, Sq, D = 1, 1, 1024
        Hq, Hkv, Sk, Dh = 32, 4, 65536, 128
        assert Hq % Hkv == 0, (Hq, Hkv)
        return {
            "x": _w((lambda *s: torch.randn(*s, dtype=torch.bfloat16) * 0.4)(B, Sq, D)),
            "k_cache": _w((lambda *s: torch.randn(*s, dtype=torch.bfloat16) * 1.6)(B, Hkv, Sk, Dh)),
            "v_cache": _w((lambda *s: torch.randn(*s, dtype=torch.bfloat16) * 1.6)(B, Hkv, Sk, Dh)),
            "wq": _w((lambda *s: torch.randn(*s, dtype=torch.bfloat16) * 1.6)(D, Hq * Dh) * (D ** -0.5)),
            "wo": _w((lambda *s: torch.randn(*s, dtype=torch.bfloat16) * 1.6)(Hq * Dh, D) * ((Hq * Dh) ** -0.5)),
        }
    _A_in = _A_setup()

    def _B_setup():
        B, S, Dm, Df = 1, 1, 1024, 3584
        return {
            "x": _w((lambda *s: torch.randn(*s, dtype=torch.bfloat16) * 0.4)(B, S, Dm)),
            "w_gate": _w((lambda *s: torch.randn(*s, dtype=torch.bfloat16) * 1.6)(Dm, Df) * (Dm ** -0.5)),
            "w_up": _w((lambda *s: torch.randn(*s, dtype=torch.bfloat16) * 1.6)(Dm, Df) * (Dm ** -0.5)),
            "w_down": _w((lambda *s: torch.randn(*s, dtype=torch.bfloat16) * 1.6)(Df, Dm) * (Df ** -0.5)),
        }
    _B_in = _B_setup()

    return {
        "A_x": _A_in["x"],
        "A_k_cache": _A_in["k_cache"],
        "A_v_cache": _A_in["v_cache"],
        "A_wq": _A_in["wq"],
        "A_wo": _A_in["wo"],
        "B_x": _B_in["x"],
        "B_w_gate": _B_in["w_gate"],
        "B_w_up": _B_in["w_up"],
        "B_w_down": _B_in["w_down"],
    }

def reference(A_x, A_k_cache, A_v_cache, A_wq, A_wo, B_x, B_w_gate, B_w_up, B_w_down):
    def _A_ref(x, k_cache, v_cache, wq, wo):
        B, Sq, D = x.shape
        Hq, Dh = 32, 128
        Hkv = k_cache.shape[1]
        rep = Hq // Hkv
        q = (lambda x, *d: x.permute(*d))((x @ wq).reshape(B, Sq, Hq, Dh), 0, 2, 1, 3)
        k = (lambda x, n, axis: torch.repeat_interleave(x, n, dim=axis))(k_cache, rep, axis=1)
        v = (lambda x, n, axis: torch.repeat_interleave(x, n, dim=axis))(v_cache, rep, axis=1)
        scores = torch.einsum("bhqd,bhkd->bhqk", q, k) * (Dh ** -0.5)
        p = _softmax(scores, axis=-1)
        o = torch.einsum("bhqk,bhkd->bhqd", p, v)
        return (lambda x, *d: x.permute(*d))(o, 0, 2, 1, 3).reshape(B, Sq, Hq * Dh) @ wo

    def _B_ref(x, w_gate, w_up, w_down):
        g = torch.einsum("bsd,df->bsf", x, w_gate)
        u = torch.einsum("bsd,df->bsf", x, w_up)
        h = _gelu(g) * u
        return torch.einsum("bsf,fd->bsd", h, w_down)

    x = A_x
    xn = _layernorm(x, axis=-1)
    s = _A_ref(xn, A_k_cache, A_v_cache, A_wq, A_wo)
    g = _silu(_B_ref(xn, B_w_gate, B_w_up, B_w_down))
    return x + s * g
```

```python
import re

TRANS = ("v_exp_f32", "v_log_f32", "v_rcp_f32", "v_rsq_f32", "v_sqrt_f32", "v_sin_f32", "v_cos_f32")

def regs_of(tok):
    tok = tok.strip()
    neg = tok.startswith("-")
    if neg: tok = tok[1:]
    if tok.startswith("abs(") or tok.startswith("|"):
        tok = tok.strip("|").replace("abs(", "").replace(")", "")
    m = re.fullmatch(r"([vs])\[(\d+):(\d+)\]", tok)
    if m: return [(m.group(1), i) for i in range(int(m.group(2)), int(m.group(3)) + 1)]
    m = re.fullmatch(r"([vs])(\d+)", tok)
    if m: return [(m.group(1), int(m.group(2)))]
    if tok == "vcc": return [("s", "vcc")]
    if tok == "exec": return [("s", "exec")]
    if tok == "m0": return [("s", "m0")]
    return []

class Ins:
    def __init__(self, text):
        self.text = text
        t = text.split(";")[0].strip()
        parts = t.split(None, 1)
        self.op = parts[0]
        rest = parts[1] if len(parts) > 1 else ""
        ops = [x.strip() for x in rest.split(",")] if rest else []
        self.mods = ""
        if ops:
            last = ops[-1].split(None, 1)
            ops[-1] = last[0]
            self.mods = last[1] if len(last) > 1 else ""
        if "quad_perm" in rest:
            i = rest.index("quad_perm")
            head = rest[:i]
            ops = [x.strip() for x in head.split(",")]
            self.mods = rest[i:]
        self.ops = ops
        op = self.op
        self.valu = op.startswith("v_") and not op.startswith("v_mfma")
        self.mfma = op.startswith("v_mfma")
        self.vmem = op.startswith("buffer_") or op.startswith("global_")
        self.ds = op.startswith("ds_")
        self.salu = op.startswith("s_")
        self.dpp = "_dpp" in op
        self.trans = any(op.startswith(x) for x in TRANS)
        self.permlane = op.startswith("v_permlane")
        self.readlane = op.startswith("v_readlane") or op.startswith("v_readfirstlane")
        self.dot = op.startswith("v_dot")
        R = [regs_of(x) for x in ops]
        self.w = []; self.r = []; self.srcC = []; self.srcAB = []
        self.states = 1
        if op == "s_nop":
            self.states = int(ops[0], 0) + 1
        elif self.mfma:
            self.w = R[0]; self.srcAB = R[1] + R[2]; self.srcC = R[3]; self.r = self.srcAB + self.srcC
            self.passes = 8 if "32x32" in op else 4
        elif self.valu:
            self.w = list(R[0]); self.r = [x for y in R[1:] for x in y]
            if self.permlane: self.w += R[1]; self.r += R[0]
            if op.startswith("v_fmac") or op.startswith("v_dot2c") or (self.dpp and ("bank_mask:0xf" not in self.mods or "row_mask:0xf" not in self.mods)):
                self.r += R[0]
            if op.startswith("v_add_co") or op.startswith("v_sub_co") or op.startswith("v_addc_co"):
                self.w += R[1]; self.r = [x for y in R[2:] for x in y]
            if op.startswith("v_cndmask") and len(ops) == 3: self.r += [("s", "vcc")]
        elif self.vmem:
            if "load" in op and " lds" not in (" " + self.mods):
                self.w = R[0]; self.r = [x for y in R[1:] for x in y]
            else:
                self.r = [x for y in R for x in y]
                if "atomic" in op and "sc0" in self.mods: self.w = R[0]
            self.widestore = ("store" in op and ("x3" in op or "x4" in op))
            self.sdata = (R[0] if op.startswith("buffer_store") else (R[1] if op.startswith("global_store") else []))
        elif self.ds:
            if op.startswith("ds_read") or "permute" in op or "swizzle" in op or "_rtn" in op:
                self.w = R[0]; self.r = [x for y in R[1:] for x in y]
            else:
                self.r = [x for y in R for x in y]
        else:
            if op.startswith("s_cmp") or op.startswith("s_cbranch") or op in ("s_waitcnt", "s_barrier", "s_branch", "s_endpgm", "s_sleep", "s_setprio"):
                self.r = [x for y in R for x in y]
            elif R:
                self.w = R[0]; self.r = [x for y in R[1:] for x in y]
                if "saveexec" in op: self.w += [("s", "exec")]

def need(p, c):
    n = 0
    pw = set(p.w)
    if not pw and not p.mfma and not getattr(p, "widestore", False): return 0
    cr = set(c.r); cw = set(c.w)
    vw = {x for x in pw if x[0] == "v"}; sw = {x for x in pw if x[0] == "s"}
    if p.valu:
        if c.mfma and vw & cr: n = max(n, 2)
        if c.dpp and vw & cr: n = max(n, 2)
        if c.permlane and vw & cr: n = max(n, 2)
        if c.readlane and vw & cr: n = max(n, 1)
        if p.trans and c.valu and not c.trans and vw & cr: n = max(n, 1)
        if p.trans and (c.vmem or c.ds or c.mfma) and vw & cr: n = max(n, 2)
        if p.dot and (c.valu or c.mfma or c.vmem or c.ds) and c.op != p.op and vw & (cr | cw): n = max(n, 3)
        if sw:
            if c.valu and sw & cr: n = max(n, 4 if c.readlane else 2)
            if c.vmem and sw & cr: n = max(n, 5)
            if c.salu and sw & cr: n = max(n, 2)
            if ("s", "vcc") in sw and c.op.startswith("s_cbranch_vcc"): n = max(n, 5)
    if p.mfma:
        P = p.passes
        far = {4: 8, 8: 12}[P]
        if c.mfma:
            if vw & set(c.srcAB): n = max(n, far)
            if vw & set(c.srcC):
                if c.srcC == p.w and c.passes == P: n = max(n, 0)
                else: n = max(n, far - 2)
            elif vw & cw: n = max(n, far - 2)
        elif (c.valu or c.vmem or c.ds) and vw & (cr | cw): n = max(n, far)
        if c.valu and set(p.srcC) & cw: n = max(n, {4: 3, 8: 7}[P])
    if getattr(p, "widestore", False):
        if set(p.sdata) & cw: n = max(n, 2)
    if p.salu and ("s", "m0") in pw and c.vmem and " lds" in (" " + c.mods): n = max(n, 1)
    if p.salu and ("s", "exec") in pw and c.dpp: n = max(n, 1)
    return n

class Asm:
    def __init__(self):
        self.lines = []
        self.hist = []
        self.vm = 0
        self.count_vm = True
        self.nops = 0
    def raw(self, s): self.lines.append(s)
    def comment(self, s): self.lines.append("    ; " + s)
    def label(self, name):
        self.lines.append(name + ":")
    def __call__(self, text):
        for t in text.strip().split("\n"):
            t = t.strip()
            if not t or t.startswith(";"):
                if t: self.lines.append("    " + t)
                continue
            if t.endswith(":"):
                self.label(t[:-1]); continue
            self.emit(t)
    def emit(self, t):
        c = Ins(t)
        dist = 0; pad = 0
        for p in reversed(self.hist):
            n = need(p, c)
            if n > dist: pad = max(pad, n - dist)
            dist += p.states
            if dist > 20: break
        if pad:
            self.nops += pad
            nop = Ins(f"s_nop {pad-1}")
            self.lines.append(f"    s_nop {pad-1}")
            self.hist.append(nop)
        self.lines.append("    " + t)
        self.hist.append(c)
        self.hist = self.hist[-24:]
        if c.vmem and self.count_vm:
            self.vm += 1
            return self.vm
        return None
    def vmem(self, t):
        return self.emit(t)
    def wait_vm(self, ticket):
        n = self.vm - ticket
        assert 0 <= n <= 63, n
        self.emit(f"s_waitcnt vmcnt({n})")
    def throttle(self, depth):
        self.emit(f"s_waitcnt vmcnt({depth-1})")
    def text(self): return "\n".join(self.lines) + "\n"
```

```python
import sys
sys.path.insert(0, "gen")
from asmlib import Asm

NAME = "recurrent_scan__gqa_block_cached__glu_gated_geglu__decode"
HEADER = open("cdna_kernels/" + NAME + ".s.ref").read().split("; Override launch geometry")[0]

STR = 5376
O_OP, O_SD, O_GU, O_ML, O_QP = 0, 2048, 3072, 4864, 5120
STAMP_OFF = 128 << 20
L_RED = 0
L_Q = 2048
QSTR = 272
L_MLW = 4352
L_MLG = 4864
L_HRED = 5120
L_OW = 13312
OWH = 528; OWW = 8 * 528
L_ORED = L_OW + 8 * OWW
L_SW = L_ORED + 4096
L_END = L_SW + 8192

def gen(N=8, layout="w0 w1 w2 s0 s1 s2 g0 g1 g2 g3 g4 g5", k_early=6, k_poll=14, v_gath=14, diag=False, pol="nt", lds=None,
        stamps="start qpub Qrdy mlpub Prdy PVend hop1 end", flag="byte", noclear=False, b0=True, slp=8, slp_tail=4):
    a = Asm()
    toks = layout.split()
    assert len(toks) == 12
    def stepoff(s):
        r = 0
        for pos, t in enumerate(toks):
            if t[0] == 's' and (s >> int(t[1])) & 1: r |= 1 << (12 + pos)
        return r
    LANE, KOFF, VOFF, MW, XF = "v1", "v2", "v3", "v4", "v5"
    HP = 6
    T = list(range(8, 16))
    XA = 16
    Q = 24
    WT = 32
    WA = 64
    S = 96
    KV = 128
    def q4(b): return f"v[{b}:{b+3}]"
    def q2(b): return f"v[{b}:{b+1}]"
    sX, sK, sV, sWQ, sWO, sGU, sWD, sOUT, sDBG, sWS = (f"s[{28+4*i}:{31+4*i}]" for i in range(10))
    sKVB, sT, sG, sIDX, sHH, sCB, sPLO, sPHI, sMSK, sL2E, sSCL, sOWN = (f"s{68+i}" for i in range(12))
    sT2, sRETRY = "s100", "s101"
    nstamp = [0]
    stl = stamps.split(); assert len(stl) == 8
    def stamp(name):
        if diag and name in stl:
            k = stl.index(name)
            a(f"s_memrealtime s[{84+2*k}:{85+2*k}]")
    def srd(dst, ptr, size):
        d = int(dst[2:dst.index(":")])
        a(f"s_mov_b32 s{d}, s{ptr}\ns_mov_b32 s{d+1}, s{ptr+1}\ns_mov_b32 s{d+2}, {size}\ns_mov_b32 s{d+3}, 0x20000")
    DPP = "row_mask:0xf bank_mask:0xf"
    def allreduce(v, op, tmp, steps=(1, 2, 4, 8), cross=True):
        for s in steps:
            a(f"{op}_dpp v{v}, v{v}, v{v} row_ror:{s} {DPP}")
        if cross:
            for sw in ("v_permlane16_swap_b32", "v_permlane32_swap_b32"):
                a(f"v_mov_b32 v{tmp}, v{v}\n{sw} v{v}, v{tmp}\n{op} v{v}, v{v}, v{tmp}")
    def unpack(lo, hi, src):
        a(f"v_lshlrev_b32 v{lo}, 16, v{src}\nv_and_b32 v{hi}, {sMSK}, v{src}")
    def gemv(acc, W, nq, X, t0, t1):
        for i in range(nq):
            for k in range(4):
                unpack(t0, t1, W + 4 * i + k)
                op = "v_mul_f32" if i == 0 else "v_fmac_f32"
                a(f"{op} v{acc+2*k}, v{t0}, v{X+i}\n{op} v{acc+2*k+1}, v{t1}, v{X+i}")
    def reduce8(acc):
        for e in range(4):
            a(f"v_permlane32_swap_b32 v{acc+e}, v{acc+e+4}")
        for e in range(4):
            a(f"v_add_f32 v{acc+e}, v{acc+e}, v{acc+e+4}")
        for e in range(2):
            a(f"v_permlane16_swap_b32 v{acc+e}, v{acc+e+2}")
        for e in range(2):
            a(f"v_add_f32 v{acc+e}, v{acc+e}, v{acc+e+2}")
        for e in range(2):
            a(f"v_add_f32_dpp v{acc+e}, v{acc+e}, v{acc+e} row_ror:8 {DPP}")
    lab = [0]
    def poll(ticket, loads, check, sleep, masked=True):
        lab[0] += 1; n = lab[0]
        if ticket is None: a("s_waitcnt vmcnt(0)")
        else: a.wait_vm(ticket)
        a(f"Lchk{n}:")
        a.hist = []
        check()
        a(f"s_cbranch_vccz Lok{n}")
        a(f"s_add_u32 {sRETRY}, {sRETRY}, 1\ns_cmp_ge_u32 {sRETRY}, 100000\ns_cbranch_scc1 Lok{n}\ns_sleep {sleep}")
        cv = a.count_vm
        a.count_vm = False
        if masked: a("s_mov_b64 exec, vcc")
        for l in loads: a(l)
        if masked: a("s_mov_b64 exec, -1")
        a.count_vm = cv
        a(f"s_waitcnt vmcnt(0)\ns_branch Lchk{n}")
        a(f"Lok{n}:")
    def chk_sent(regs, t):
        def f():
            r = list(regs)
            cur = r.pop(0)
            first = True
            while r:
                if len(r) >= 2:
                    a(f"v_max3_u32 v{t}, v{cur}, v{r[0]}, v{r[1]}"); r = r[2:]
                else:
                    a(f"v_max_u32 v{t}, v{cur}, v{r[0]}"); r = r[1:]
                cur = t
            a(f"v_cmp_eq_u32 vcc, -1, v{cur}")
        return f
    def only_wave(w, name):
        a(f"s_cmp_lg_u32 s3, {w}\ns_cbranch_scc1 {name}")
        a.count_vm = False
    def end_only(name):
        a(f"{name}:")
        a.count_vm = True

    a("s_cmp_ge_u32 s2, 256\ns_cbranch_scc1 L_end")
    if diag:
        a.raw(f"; stamps: {stamps}")
        for k in range(8): a(f"s_mov_b64 s[{84+2*k}:{85+2*k}], 0")
    stamp("start")
    a("s_load_dwordx16 s[4:19], s[0:1], 0\ns_load_dwordx8 s[20:27], s[0:1], 64")
    a("s_getpc_b64 s[82:83]")
    a(f"v_lshrrev_b32 v8, 6, v0\nv_and_b32 {LANE}, 63, v0\nv_lshlrev_b32 v9, 7, v0")
    a("v_readfirstlane_b32 s3, v8")
    a("s_cmp_ge_u32 s3, 2\ns_cbranch_scc1 L_nopf")
    a.count_vm = False
    a("global_load_dword v255, v9, s[82:83]")
    a.count_vm = True
    a("L_nopf:")
    a(f"s_lshr_b32 {sG}, s2, 6\ns_and_b32 {sIDX}, s2, 63")
    a(f"s_mov_b32 {sMSK}, 0xffff0000")
    a(f"v_lshlrev_b32 {VOFF}, 4, {LANE}")
    a(f"v_lshrrev_b32 v8, 3, {LANE}")
    a(f"v_and_b32 v9, 7, {LANE}")
    a(f"v_lshlrev_b32 v10, 5, {LANE}")
    a("v_lshlrev_b32 v11, 3, v8")
    a("v_lshlrev_b32 v12, 4, v8")
    a("v_lshlrev_b32 v13, 15, v8\nv_lshl_add_u32 v13, v9, 4, v13")
    a(f"s_and_b32 {sT}, {sIDX}, 3\ns_lshl_b32 {sT}, {sT}, 8\ns_lshl_b32 {sT2}, s3, 5\ns_add_u32 {sT}, {sT}, {sT2}")
    a(f"s_lshl_b32 s80, {sT}, 1")
    a(f"s_lshl_b32 {sT}, {sT}, 13\ns_lshr_b32 {sT2}, s2, 2\ns_lshl_b32 {sT2}, {sT2}, 7\ns_add_u32 {sT}, {sT}, {sT2}")
    a("s_and_b32 s81, s2, 15\ns_lshl_b32 s81, s81, 7")
    a("s_waitcnt lgkmcnt(0)")
    srd(sX, 4, 2048)
    srd(sWQ, 10, 8 << 20)
    tx = a.vmem(f"buffer_load_dwordx4 {q4(S)}, v10, {sX}, 0 offen")
    tx = a.vmem(f"buffer_load_dwordx4 {q4(S+4)}, v10, {sX}, 0 offen offset:16")
    a.vmem(f"buffer_load_dwordx2 {q2(S+8)}, v11, {sX}, s80 offen")
    txa = a.vmem(f"buffer_load_dwordx4 {q4(S+12)}, v12, {sX}, s81 offen")
    twq = []
    for i in range(4):
        twq.append(a.vmem(f"buffer_load_dwordx4 {q4(WT+4*i)}, v13, {sWQ}, {sT} offen {pol}"))
        if i < 3: a(f"s_add_u32 {sT}, {sT}, 8192")
    srd(sK, 6, 64 << 20)
    a(f"s_lshl_b32 {sKVB}, {sG}, 24")
    for pos, t in enumerate(toks):
        if t[0] in 'gw':
            src = sIDX if t[0] == 'g' else 's3'
            a(f"s_bfe_u32 {sT}, {src}, {(1<<16) | int(t[1])}\ns_lshl_b32 {sT}, {sT}, {12+pos}\ns_or_b32 {sKVB}, {sKVB}, {sT}")
    a(f"v_and_b32 {KOFF}, 3, {LANE}\nv_lshlrev_b32 {KOFF}, 10, {KOFF}")
    a(f"v_bfe_u32 v10, {LANE}, 2, 1\nv_lshl_add_u32 {KOFF}, v10, 8, {KOFF}")
    a(f"v_bfe_u32 v10, {LANE}, 3, 1\nv_lshl_add_u32 {KOFF}, v10, 6, {KOFF}")
    a(f"v_lshrrev_b32 v10, 4, {LANE}\nv_lshl_add_u32 {KOFF}, v10, 4, {KOFF}")
    kt = []; vt = []
    def issueK(n, thr=True):
        for _ in range(n):
            i = len(kt)
            if i >= 32: return
            t, qd = divmod(i, 4)
            if qd == 0 or True:
                a(f"s_add_u32 {sT}, {sKVB}, {stepoff(t)}")
            if thr: a.throttle(N)
            kt.append(a.vmem(f"buffer_load_dwordx4 {q4(KV+4*i)}, {KOFF}, {sK}, {sT} offen offset:{(qd>>1)*512 + (qd&1)*128} {pol}"))
    def issueV(n, thr=True):
        for _ in range(n):
            i = len(vt)
            if i >= 32: return
            t, qd = divmod(i, 4)
            a(f"s_add_u32 {sT}, {sKVB}, {stepoff(t)}")
            if thr: a.throttle(N)
            vt.append(a.vmem(f"buffer_load_dwordx4 {q4(KV+4*i)}, {VOFF}, {sV}, {sT} offen offset:{qd*1024} {pol}"))
    if b0: a("s_barrier")
    issueK(k_early, thr=False)
    srd(sWS, 26, 256 << 20)
    srd(sDBG, 24, 256)
    srd(sV, 8, 64 << 20)
    srd(sWO, 12, 8 << 20)
    srd(sWD, 20, 7 << 20)
    srd(sOUT, 22, 2048)
    a("s_cmp_ge_u32 s2, 128\ns_cselect_b32 s48, s18, s16\ns_cselect_b32 s49, s19, s17")
    a(f"s_mov_b32 s50, {7<<20}\ns_mov_b32 s51, 0x20000")
    a(f"s_mul_i32 {sOWN}, s2, {STR}")
    a(f"s_and_b32 {sHH}, s2, 7\ns_lshl_b32 {sHH}, {sHH}, 2\ns_bfe_u32 {sT}, s2, 0x20003\ns_add_u32 {sHH}, {sHH}, {sT}")
    a(f"s_lshr_b32 {sCB}, s2, 5")
    a(f"s_mov_b32 {sPLO}, 0x05040100\ns_mov_b32 {sPHI}, 0x07060302\ns_mov_b32 {sL2E}, 0x3fb8aa3b\ns_mov_b32 {sSCL}, 0x3db504f3")
    a(f"s_mov_b32 {sRETRY}, 0")
    only_wave(7 if not noclear else 9, "L_noclr")
    a("v_mov_b32 v8, -1\nv_mov_b32 v9, -1\nv_mov_b32 v10, -1\nv_mov_b32 v11, -1")
    for i in range(4):
        a(f"buffer_store_dwordx4 v[8:11], {VOFF}, {sWS}, {sOWN} offen offset:{1024*i} sc1")
    a(f"s_add_u32 {sT}, {sOWN}, 4096")
    a(f"buffer_store_dwordx4 v[8:11], {VOFF}, {sWS}, {sT} offen sc1")
    a("s_nop 1")
    end_only("L_noclr")
    a(f"v_and_b32 v8, 1, {LANE}\nv_lshlrev_b32 v8, 2, v8\nv_lshrrev_b32 v9, 5, {LANE}\nv_lshl_add_u32 v8, v9, 1, v8")
    a(f"s_lshl_b32 {sT}, s2, 3")
    a.vmem(f"buffer_load_ushort {XF}, v8, {sX}, {sT} offen")

    a.wait_vm(txa)
    stamp("xarr")
    X = S + 16
    for i in range(8): unpack(X + 2 * i, X + 2 * i + 1, S + i)
    a(f"v_add_f32 v8, v{X}, v{X+1}\nv_add_f32 v9, v{X+2}, v{X+3}")
    for i in range(4, 16, 2): a(f"v_add_f32 v8, v8, v{X+i}\nv_add_f32 v9, v9, v{X+i+1}")
    a("v_add_f32 v8, v8, v9")
    allreduce(8, "v_add_f32", 9)
    a("v_mul_f32 v8, 0x3a800000, v8")
    for i in range(16): a(f"v_sub_f32 v{X+i}, v{X+i}, v8")
    a(f"v_mul_f32 v10, v{X}, v{X}\nv_mul_f32 v9, v{X+1}, v{X+1}")
    for i in range(2, 16, 2): a(f"v_fmac_f32 v10, v{X+i}, v{X+i}\nv_fmac_f32 v9, v{X+i+1}, v{X+i+1}")
    a("v_add_f32 v10, v10, v9")
    allreduce(10, "v_add_f32", 9)
    a("v_mul_f32 v10, 0x3a800000, v10")
    a("v_cvt_pk_bf16_f32 v9, v8, v10")
    unpack(8, 10, 9)
    a("v_add_f32 v10, 0x3727c5ac, v10\nv_cvt_pk_bf16_f32 v10, v10, v10\nv_lshlrev_b32 v10, 16, v10")
    a("v_sqrt_f32 v10, v10\nv_cvt_pk_bf16_f32 v10, v10, v10\nv_lshlrev_b32 v10, 16, v10\nv_rcp_f32 v10, v10")
    def normalize(lo, src):
        hi = lo + 1
        unpack(lo, hi, src)
        a(f"v_sub_f32 v{lo}, v{lo}, v8\nv_sub_f32 v{hi}, v{hi}, v8\nv_cvt_pk_bf16_f32 v9, v{lo}, v{hi}")
        unpack(lo, hi, 9)
        a(f"v_mul_f32 v{lo}, v{lo}, v10\nv_mul_f32 v{hi}, v{hi}, v10\nv_cvt_pk_bf16_f32 v9, v{lo}, v{hi}")
        unpack(lo, hi, 9)
    XQ = X
    for i in range(2): normalize(XQ + 2 * i, S + 8 + i)
    for i in range(4): normalize(XA + 2 * i, S + 12 + i)
    a.wait_vm(twq[3])
    stamp("wqarr")
    QA = WT + 16
    gemv(QA, WT, 4, XQ, 8, 9)
    reduce8(QA)
    a(f"v_and_b32 v8, 7, {LANE}\nv_lshlrev_b32 v8, 5, v8\nv_lshrrev_b32 v9, 4, {LANE}\nv_lshl_add_u32 v15, v9, 3, v8")
    a(f"s_lshl_b32 {sT}, s3, 8\nv_add_u32 v8, {sT}, v15")
    a(f"ds_write_b64 v8, {q2(QA)} offset:{L_RED}")
    a("s_waitcnt lgkmcnt(0)\ns_barrier")
    stamp("B1")
    only_wave(7, "L_noq")
    a("s_mov_b64 exec, 0xffff")
    for w in range(8): a(f"ds_read_b128 {q4(S+4*w)}, {VOFF} offset:{L_RED+256*w}")
    a("s_waitcnt lgkmcnt(0)")
    for w in range(1, 8):
        for k in range(4): a(f"v_add_f32 v{S+k}, v{S+k}, v{S+4*w+k}")
    a(f"s_add_u32 {sT}, {sOWN}, {O_QP}")
    a(f"buffer_store_dwordx4 {q4(S)}, {VOFF}, {sWS}, {sT} offen sc1")
    a("s_mov_b64 exec, 1\nv_mov_b32 v8, 1\ns_waitcnt vmcnt(0)")
    if flag == "byte":
        a(f"buffer_store_byte v8, off, {sDBG}, s2 sc1")
    else:
        a(f"s_and_b32 {sT}, s2, 63\ns_lshl_b32 {sT}, {sT}, 2\nbuffer_atomic_add v8, off, {sDBG}, {sT} sc1")
    a("s_mov_b64 exec, -1")
    end_only("L_noq")
    stamp("qpub")
    issueK(k_poll - len(kt))
    only_wave(7, "L_nog")
    a(f"v_lshlrev_b32 v14, 2, {LANE}")
    pl = f"buffer_load_dword v13, v14, {sDBG}, 0 offen sc1"
    a(pl)
    a(f"v_bfe_u32 v8, {LANE}, 4, 1\nv_lshrrev_b32 v9, 5, {LANE}\nv_lshl_add_u32 v8, v8, 2, v9\nv_mul_u32_u24 v8, {STR}, v8")
    a(f"v_and_b32 v9, 15, {LANE}\nv_lshl_add_u32 v12, v9, 4, v8")
    a(f"s_mul_i32 {sT2}, {sG}, {64*STR}\ns_add_u32 {sT2}, {sT2}, {O_QP}")
    a("s_mov_b32 s80, " + ("0x01010101" if flag == "byte" else "4"))
    stamp("prepoll")
    poll(None, [pl], lambda: a("v_cmp_ne_u32 vcc, s80, v13"), slp)
    stamp("pollok")
    def qreg(h, t): return (S if t == 0 else WT) + 4 * h
    for h in range(8):
        for t in range(2):
            a(f"buffer_load_dwordx4 {q4(qreg(h,t))}, v12, {sWS}, {sT2} offen sc1")
            if not (h == 7 and t == 1): a(f"s_add_u32 {sT2}, {sT2}, {(2 if t == 0 else 6)*STR}")
    a(f"v_and_b32 v9, 31, {LANE}\nv_lshlrev_b32 v9, 3, v9\nv_lshrrev_b32 v8, 5, {LANE}\nv_mul_u32_u24 v8, {QSTR}, v8\nv_add_u32 v9, v9, v8")
    a("s_waitcnt vmcnt(0)")
    stamp("qarr")
    for k in range(32): a(f"v_add_f32 v{S+k}, v{S+k}, v{WT+k}")
    for hp in range(4):
        b = S + 8 * hp
        for k in range(4): a(f"v_permlane32_swap_b32 v{b+k}, v{b+4+k}")
        for k in range(4): a(f"v_add_f32 v{b+k}, v{b+k}, v{b+4+k}")
        a(f"v_cvt_pk_bf16_f32 v{b}, v{b}, v{b+1}\nv_cvt_pk_bf16_f32 v{b+1}, v{b+2}, v{b+3}")
        a(f"ds_write_b64 v9, {q2(b)} offset:{L_Q+2*hp*QSTR}")
    end_only("L_nog")
    issueK(32)
    a(f"v_lshrrev_b32 v8, 3, {LANE}\nv_mul_u32_u24 v8, {8*7168}, v8\nv_and_b32 v9, 7, {LANE}\nv_lshl_add_u32 v8, v9, 4, v8")
    a(f"s_cmp_eq_u32 s3, 7\ns_cselect_b32 s81, 0x40000000, 0\nv_add_u32 v8, s81, v8")
    a(f"s_and_b32 {sT2}, s2, 15\ns_mul_i32 {sT2}, {sT2}, {64*7168}\ns_bfe_u32 s80, s2, 0x30004\ns_mul_i32 s80, s80, 896\ns_add_u32 {sT2}, {sT2}, s80")
    a(f"s_lshl_b32 s80, s3, 7\ns_add_u32 {sT2}, {sT2}, s80")
    tgu = []
    for i in range(8):
        a.throttle(N)
        tgu.append(a.vmem(f"buffer_load_dwordx4 {q4(WA+4*i)}, v8, {sGU}, {sT2} offen {pol}"))
        if i < 7: a(f"s_add_u32 {sT2}, {sT2}, 7168")
    a("s_waitcnt lgkmcnt(0)\ns_barrier")
    a(f"v_and_b32 v9, 7, {LANE}\nv_mul_u32_u24 v9, {QSTR}, v9\nv_bfe_u32 v10, {LANE}, 3, 1\nv_lshl_add_u32 v9, v10, 6, v9\nv_lshrrev_b32 v10, 4, {LANE}\nv_lshl_add_u32 v9, v10, 4, v9")
    a(f"ds_read_b128 {q4(Q)}, v9 offset:{L_Q}\nds_read_b128 {q4(Q+4)}, v9 offset:{L_Q+128}")
    a("s_waitcnt lgkmcnt(0)")
    stamp("Qrdy")
    ACC = WT
    def qk_mfma(t):
        b = KV + 16 * t; c = ACC + 8 * (t & 1)
        a.wait_vm(kt[4 * t + 3])
        a(f"v_mfma_f32_16x16x32_bf16 {q4(c)}, {q4(b)}, {q4(Q)}, 0")
        a(f"v_mfma_f32_16x16x32_bf16 {q4(c+4)}, {q4(b+8)}, {q4(Q)}, 0")
        a(f"v_mfma_f32_16x16x32_bf16 {q4(c)}, {q4(b+4)}, {q4(Q+4)}, {q4(c)}")
        a(f"v_mfma_f32_16x16x32_bf16 {q4(c+4)}, {q4(b+12)}, {q4(Q+4)}, {q4(c+4)}")
    def qk_fix(t):
        c = ACC + 8 * (t & 1); s = S + 4 * t
        for i in range(4): a(f"v_permlane32_swap_b32 v{c+i}, v{c+4+i}")
        for i in range(4): a(f"v_add_f32_dpp v{c+i}, v{c+4+i}, v{c+i} row_ror:8 {DPP}")
        for i in (0, 2):
            a(f"v_cvt_pk_bf16_f32 v{c+4+i}, v{c+i}, v{c+i+1}")
        for i in (0, 2):
            unpack(c + i, c + i + 1, c + 4 + i)
        for i in range(4): a(f"v_mul_f32 v{c+i}, {sSCL}, v{c+i}")
        for i in (0, 2):
            a(f"v_cvt_pk_bf16_f32 v{c+4+i}, v{c+i}, v{c+i+1}")
        for i in (0, 2):
            unpack(s + i, s + i + 1, c + 4 + i)
        if t == 0:
            a(f"v_max_f32 {MW}, v{s}, v{s+1}")
        else:
            a(f"v_max3_f32 {MW}, {MW}, v{s}, v{s+1}")
        a(f"v_max3_f32 {MW}, {MW}, v{s+2}, v{s+3}")
    qk_mfma(0)
    for t in range(8):
        if t + 1 < 8: qk_mfma(t + 1)
        if t == 4: issueV(4, thr=False)
        qk_fix(t)
    issueV(4, thr=False)
    mw = int(MW[1:])
    allreduce(mw, "v_max_f32", 9, steps=())
    a(f"v_mul_f32 v8, {sL2E}, {MW}")
    for i in range(32): a(f"v_fma_f32 v{S+i}, v{S+i}, {sL2E}, -v8")
    for i in range(32): a(f"v_exp_f32 v{S+i}, v{S+i}")
    a(f"v_add_f32 v11, v{S}, v{S+1}\nv_add_f32 v9, v{S+2}, v{S+3}")
    for i in range(4, 32, 2): a(f"v_add_f32 v11, v11, v{S+i}\nv_add_f32 v9, v9, v{S+i+1}")
    a("v_add_f32 v11, v11, v9")
    allreduce(11, "v_add_f32", 9, steps=())
    a(f"v_mov_b32 v10, {MW}")
    a(f"v_lshlrev_b32 v8, 3, {LANE}\ns_lshl_b32 s80, s3, 6\nv_add_u32 v9, s80, v8")
    a(f"s_mov_b64 exec, 0xff\nds_write_b64 v9, v[10:11] offset:{L_MLW}\ns_mov_b64 exec, -1")
    a("s_waitcnt lgkmcnt(0)\ns_barrier")
    only_wave(7, "L_noml")
    a(f"ds_read_b64 v[10:11], v8 offset:{L_MLW}\ns_waitcnt lgkmcnt(0)")
    a("v_mov_b32 v12, v10")
    allreduce(12, "v_max_f32", 9, steps=(8,))
    a(f"v_sub_f32 v10, v10, v12\nv_mul_f32 v10, {sL2E}, v10\nv_exp_f32 v10, v10\nv_mul_f32 v13, v10, v11")
    allreduce(13, "v_add_f32", 9, steps=(8,))
    a("v_min_u32 v12, -2, v12\nv_min_u32 v13, -2, v13")
    a(f"s_add_u32 {sT}, {sOWN}, {O_ML}\ns_mov_b64 exec, 0xff")
    a(f"buffer_store_dwordx2 v[12:13], v8, {sWS}, {sT} offen sc1")
    a("s_mov_b64 exec, -1")
    end_only("L_noml")
    stamp("mlpub")
    a.wait_vm(tgu[7])
    GA = WT
    gemv(GA, WA, 8, XA, 8, 9)
    reduce8(GA)
    a(f"v_min_u32 v{GA}, -2, v{GA}\nv_min_u32 v{GA+1}, -2, v{GA+1}")
    a(f"s_lshl_b32 {sT2}, s3, 8\ns_add_u32 {sT2}, {sT2}, {sOWN}\nv_add_u32 v8, s81, v15")
    a("s_mov_b32 exec_lo, 0x00ff00ff\ns_mov_b32 exec_hi, 0x00ff00ff")
    a.vmem(f"buffer_store_dwordx2 {q2(GA)}, v8, {sWS}, {sT2} offen offset:{O_GU} sc1")
    a("s_mov_b64 exec, -1")
    issueV(v_gath - len(vt))
    a(f"v_mul_u32_u24 v12, {STR}, {LANE}")
    a(f"s_mul_i32 s80, {sG}, {64*STR}\ns_lshl_b32 {sT2}, s3, 3\ns_add_u32 s80, s80, {sT2}\ns_add_u32 s80, s80, {O_ML}")
    a(f"v_lshrrev_b32 v8, 5, {LANE}\nv_mul_u32_u24 v8, {STR}, v8\nv_and_b32 v9, 31, {LANE}\nv_lshl_add_u32 v13, v9, 4, v8")
    a("v_cmp_lt_u32 vcc, 27, v9\nv_mov_b32 v8, 0x40000000\nv_cndmask_b32 v13, v13, v8, vcc")
    a(f"s_lshr_b32 s81, {sHH}, 2\ns_lshl_b32 s81, s81, 3\ns_add_u32 s81, s81, s3\ns_mul_i32 s81, s81, {2*STR}")
    a(f"s_and_b32 {sT2}, {sHH}, 3\ns_mul_i32 {sT2}, {sT2}, 448\ns_add_u32 s81, s81, {sT2}\ns_add_u32 {sT2}, s81, {128*STR}")
    G = WT
    gl = [f"buffer_load_dwordx2 {q2(G+8)}, v12, {sWS}, s80 offen sc1",
          f"buffer_load_dwordx4 {q4(G)}, v13, {sWS}, s81 offen offset:{O_GU} sc1",
          f"buffer_load_dwordx4 {q4(G+4)}, v13, {sWS}, {sT2} offen offset:{O_GU} sc1"]
    for l in gl: tg = a.vmem(l)
    sv = sT;
    issueV(N - 1)
    poll(tg, gl, chk_sent(range(G, G + 10), 8), slp)
    a(f"v_mov_b32 v10, v{G+8}")
    allreduce(10, "v_max_f32", 9)
    a(f"v_sub_f32 v8, v{G+8}, v10\nv_mul_f32 v8, {sL2E}, v8\nv_exp_f32 v8, v8\nv_mul_f32 v11, v8, v{G+9}")
    allreduce(11, "v_add_f32", 9)
    a("v_rcp_f32 v11, v11")
    a(f"s_lshl_b32 s80, s3, 3\nv_mov_b32 v8, s80")
    a(f"ds_write_b64 v8, v[10:11] offset:{L_MLG}")
    for k in range(4): a(f"v_permlane32_swap_b32 v{G+k}, v{G+4+k}")
    for k in range(4): a(f"v_add_f32 v{G+k}, v{G+k}, v{G+4+k}")
    a(f"s_lshl_b32 s80, s3, 10\nv_add_u32 v8, s80, {VOFF}")
    a(f"ds_write_b128 v8, {q4(G)} offset:{L_HRED}")
    a("s_waitcnt lgkmcnt(0)\ns_barrier")
    a(f"v_and_b32 v8, 7, {LANE}\nv_lshlrev_b32 v9, 3, v8\nds_read_b64 v[10:11], v9 offset:{L_MLG}")
    a(f"v_lshlrev_b32 v8, 10, v8\nv_bfe_u32 v9, {LANE}, 3, 1\nv_lshl_add_u32 v8, v9, 9, v8\nv_lshrrev_b32 v9, 4, {LANE}\nv_lshl_add_u32 v8, v9, 4, v8")
    a(f"s_lshl_b32 s80, s3, 6\nv_add_u32 v8, s80, v8\nds_read_b128 {q4(G)}, v8 offset:{L_HRED}")
    a("s_waitcnt lgkmcnt(0)")
    stamp("Prdy")
    a(f"v_sub_f32 v10, {MW}, v10\nv_mul_f32 v10, {sL2E}, v10\nv_exp_f32 v10, v10\nv_mul_f32 v10, v10, v11")
    for i in range(0, 32, 2):
        a(f"v_mul_f32 v{S+i}, v{S+i}, v10\nv_mul_f32 v{S+i+1}, v{S+i+1}, v10\nv_cvt_pk_bf16_f32 v{S+i//2}, v{S+i}, v{S+i+1}")
    for m in ("quad_perm:[1,0,3,2]", "quad_perm:[2,3,0,1]", "row_half_mirror"):
        for k in range(4): a(f"v_add_f32_dpp v{G+k}, v{G+k}, v{G+k} {m} {DPP}")
    for i in (0, 2): a(f"v_cvt_pk_bf16_f32 v{G+4+i}, v{G+i}, v{G+i+1}")
    for i in (0, 2): unpack(G + i, G + i + 1, G + 4 + i)
    for k in range(4): a(f"v_mov_b32_dpp v{G+4+k}, v{G+k} row_ror:8 {DPP}")
    a("s_mov_b32 s80, 0x3d372713\ns_mov_b32 s81, 0xc0135761")
    for k in range(4): a(f"v_mul_f32 v{G+8+k}, v{G+k}, v{G+k}")
    for k in range(4): a(f"v_fma_f32 v{G+8+k}, v{G+8+k}, s80, 1.0")
    for k in range(4): a(f"v_mul_f32 v{G+8+k}, v{G+8+k}, v{G+k}")
    for k in range(4): a(f"v_mul_f32 v{G+8+k}, s81, v{G+8+k}")
    for k in range(4): a(f"v_exp_f32 v{G+8+k}, v{G+8+k}")
    for k in range(4): a(f"v_add_f32 v{G+8+k}, 1.0, v{G+8+k}")
    for k in range(4): a(f"v_rcp_f32 v{G+8+k}, v{G+8+k}")
    for k in range(4): a(f"v_mul_f32 v{G+k}, v{G+k}, v{G+8+k}")
    for i in (0, 2): a(f"v_cvt_pk_bf16_f32 v{G+8+i}, v{G+i}, v{G+i+1}")
    for i in (0, 2): unpack(G + i, G + i + 1, G + 8 + i)
    for k in range(4): a(f"v_mul_f32 v{G+k}, v{G+k}, v{G+4+k}")
    AO = Q
    for k in range(4): a(f"v_mov_b32 v{AO+k}, 0")
    a("s_mov_b32 exec_lo, 0x00020002\ns_mov_b32 exec_hi, 0x00020002")
    a(f"v_cvt_pk_bf16_f32 v{AO+2}, v{G}, v{G+1}\nv_cvt_pk_bf16_f32 v{AO+3}, v{G+2}, v{G+3}")
    a("s_mov_b64 exec, -1")
    VT = S + 16
    def transp(dst, b, e, nq=4):
        sel = sPHI if e & 1 else sPLO
        for t in range(nq):
            a(f"v_perm_b32 v{dst+t}, v{b+8*t+4+(e>>1)}, v{b+8*t+(e>>1)}, {sel}")
    def pv(tau):
        b = KV + 32 * tau
        a.wait_vm(vt[8 * tau + 7])
        transp(VT, b, 0)
        for e in range(8):
            if e < 7: transp(VT + 4 * ((e + 1) & 1), b, e + 1)
            c = q4(WA + 4 * e) if tau else "0"
            a(f"v_mfma_f32_16x16x32_bf16 {q4(WA+4*e)}, {q4(VT+4*(e&1))}, {q4(S+4*tau)}, {c}")
    a(f"v_lshrrev_b32 v8, 5, {LANE}\nv_lshlrev_b32 v8, 16, v8\nv_bfe_u32 v9, {LANE}, 4, 1\nv_lshl_add_u32 v8, v9, 13, v8")
    a(f"v_and_b32 v9, 15, {LANE}\nv_lshl_add_u32 v12, v9, 4, v8")
    a(f"s_and_b32 s80, s3, 1\ns_lshl_b32 s80, s80, 6\ns_lshr_b32 s81, s3, 1\ns_add_u32 s80, s80, s81\ns_lshl_b32 s81, {sHH}, 7\ns_add_u32 s80, s80, s81")
    a(f"s_lshl_b32 s80, s80, 11\ns_lshl_b32 s81, {sCB}, 8\ns_add_u32 s80, s80, s81")
    a(f"v_lshrrev_b32 v8, 4, {LANE}\nv_lshlrev_b32 v8, 13, v8\nv_lshl_add_u32 v13, v9, 4, v8")
    a(f"s_cmp_eq_u32 s3, 7\ns_cselect_b32 {sT2}, 0x40000000, 0\nv_add_u32 v13, {sT2}, v13")
    a(f"s_mul_i32 {sT2}, {sHH}, 112\ns_lshl_b32 s82, s3, 4\ns_add_u32 {sT2}, {sT2}, s82\ns_lshl_b32 {sT2}, {sT2}, 11\ns_add_u32 s81, s81, {sT2}")
    done = 0
    def pv_ready():
        nonlocal done
        while done < 4 and len(vt) >= 8 * done + 8 and (a.vm - vt[8 * done + 7]) >= N - 1:
            pv(done); done += 1
    pv_ready()
    while len(vt) < 32:
        issueV(1); pv_ready()
    tw = []
    for i in range(4):
        tw.append(a.vmem(f"buffer_load_dwordx4 {q4(WT+16+4*i)}, v13, {sWD}, s81 offen offset:{(i&1)*2048} {pol}"))
        if i == 1: a("s_add_u32 s81, s81, 4096")
    for i in range(4):
        tw.append(a.vmem(f"buffer_load_dwordx4 {q4(WT+4*i)}, v12, {sWO}, s80 offen {pol}"))
        if i < 3: a("s_add_u32 s80, s80, 16384")
    a(f"v_and_b32 v8, 7, {LANE}\nv_mul_u32_u24 v8, {OWH}, v8\nv_lshrrev_b32 v9, 3, {LANE}\nv_lshl_add_u32 v8, v9, 4, v8\ns_mul_i32 s82, s3, {OWW}\nv_add_u32 v16, s82, v8")
    a(f"s_mul_i32 s82, s3, {OWH}\nv_lshlrev_b32 v17, 3, {LANE}\nv_add_u32 v17, s82, v17")
    a(f"v_lshlrev_b32 v18, 2, {LANE}")
    a(f"s_lshl_b32 s82, s3, 8\ns_add_u32 s82, s82, {sOWN}")
    a(f"v_lshrrev_b32 v8, 4, {LANE}\nv_mul_u32_u24 v8, {STR}, v8\nv_and_b32 v9, 15, {LANE}\nv_lshl_add_u32 v19, v9, 4, v8")
    a(f"s_lshr_b32 s83, {sHH}, 3\ns_lshl_b32 s83, s83, 3\ns_add_u32 s83, s83, s3\ns_mul_i32 s83, s83, {8*STR}\ns_and_b32 {sT2}, {sHH}, 7\ns_lshl_b32 {sT2}, {sT2}, 8\ns_add_u32 s83, s83, {sT2}")
    a(f"s_add_u32 {sT2}, s83, {4*STR}")
    SEL = Q + 4
    a(f"v_and_b32 v8, 1, {LANE}\nv_lshlrev_b32 v8, 4, v8\nv_mov_b32 v9, 0x3f80\nv_lshlrev_b32 v9, v8, v9\nv_bfe_u32 v8, {LANE}, 1, 2")
    for k in range(4):
        a(f"v_cmp_eq_u32 vcc, {k}, v8\nv_cndmask_b32 v{SEL+k}, 0, v9, vcc")
    a(f"v_and_b32 v8, 15, {LANE}\nv_lshlrev_b32 v20, 5, v8\nv_bfe_u32 v9, {LANE}, 4, 1\nv_lshl_add_u32 v20, v9, 4, v20\ns_lshl_b32 s80, s3, 9\nv_add_u32 v20, s80, v20")
    a(f"v_and_b32 v9, 7, {LANE}\nv_lshlrev_b32 v21, 9, v9\nv_lshrrev_b32 v9, 4, {LANE}\nv_lshl_add_u32 v21, v9, 4, v21\ns_lshl_b32 s80, s3, 6\nv_add_u32 v21, s80, v21")
    a(f"v_lshlrev_b32 v22, 6, v8\ns_lshl_b32 s80, s3, 10\nv_add_u32 v22, s80, v22")
    a(f"v_lshrrev_b32 v8, 1, {LANE}\nv_mul_u32_u24 v8, {STR}, v8\nv_and_b32 v9, 1, {LANE}\nv_lshl_add_u32 v23, v9, 4, v8")
    a(f"s_mul_i32 s81, {sCB}, {32*STR}\ns_and_b32 s80, s2, 31\ns_lshl_b32 s80, s80, 5\ns_add_u32 s81, s81, s80")
    while done < 4:
        pv(done); done += 1
    stamp("PVend")
    for e in range(4):
        for i in range(4):
            a(f"v_mov_b32_dpp v{WA+4*e+i}, v{WA+4*(e+4)+i} row_ror:8 row_mask:0xf bank_mask:0xc")
        a(f"ds_write_b128 v16, {q4(WA+4*e)} offset:{L_OW+128*e}")
    a("s_waitcnt lgkmcnt(0)\ns_barrier")
    R = S
    for w in range(8): a(f"ds_read_b64 {q2(R+2*w)}, v17 offset:{L_OW+OWW*w}")
    a("s_waitcnt lgkmcnt(0)")
    for st in (8, 4, 2):
        for k in range(st): a(f"v_add_f32 v{R+k}, v{R+k}, v{R+st+k}")
    a(f"v_cvt_pk_bf16_f32 v{R}, v{R}, v{R+1}\nv_min_u32 v{R}, -2, v{R}")
    for k in (1, 2, 3): a(f"v_mov_b32_dpp v{R+k}, v{R} quad_perm:[{k},{k},{k},{k}] {DPP}")
    a("s_mov_b32 exec_lo, 0x11111111\ns_mov_b32 exec_hi, 0x11111111")
    a.vmem(f"buffer_store_dwordx4 {q4(R)}, v18, {sWS}, s82 offen sc1")
    a("s_mov_b64 exec, -1")
    GO = S + 8
    ol = [f"buffer_load_dwordx4 {q4(GO)}, v19, {sWS}, s83 offen sc1",
          f"buffer_load_dwordx4 {q4(GO+4)}, v19, {sWS}, {sT2} offen sc1"]
    for l in ol: to = a.vmem(l)
    BW = KV
    a.wait_vm(tw[7])
    for e in range(8): transp(BW + 4 * e, WT, e)
    poll(to, ol, chk_sent(range(GO, GO + 8), 8), slp_tail)
    stamp("hop1")
    a(f"v_mfma_f32_16x16x32_bf16 {q4(R)}, {q4(SEL)}, {q4(GO)}, 0")
    a(f"v_mfma_f32_16x16x32_bf16 {q4(R)}, {q4(SEL)}, {q4(GO+4)}, {q4(R)}")
    a(f"ds_write_b128 v20, {q4(R)} offset:{L_ORED}")
    a("s_waitcnt lgkmcnt(0)\ns_barrier")
    a(f"ds_read_b128 {q4(R)}, v21 offset:{L_ORED}\ns_waitcnt lgkmcnt(0)")
    for m in ("quad_perm:[1,0,3,2]", "quad_perm:[2,3,0,1]", "row_half_mirror"):
        for k in range(4): a(f"v_add_f32_dpp v{R+k}, v{R+k}, v{R+k} {m} {DPP}")
    a("s_mov_b32 exec_lo, 0x00010001\ns_mov_b32 exec_hi, 0x00010001")
    a(f"v_cvt_pk_bf16_f32 v{AO}, v{R}, v{R+1}\nv_cvt_pk_bf16_f32 v{AO+1}, v{R+2}, v{R+3}")
    a("s_mov_b64 exec, -1\ns_nop 1")
    for e in range(8): a(f"v_mfma_f32_16x16x32_bf16 {q4(WA+4*e)}, {q4(AO)}, {q4(BW+4*e)}, 0")
    a("s_mov_b64 exec, 0xffff")
    for e in range(8): a(f"ds_write_b64 v22, {q2(WA+4*e)} offset:{L_SW+8*e}")
    a("s_mov_b64 exec, -1")
    a("s_waitcnt lgkmcnt(0)\ns_barrier")
    if not diag:
        a("s_cmp_lg_u32 s3, 0\ns_cbranch_scc1 L_end")
    else:
        a("s_cmp_lg_u32 s3, 0\ns_cbranch_scc1 L_fin")
    for w in range(8): a(f"ds_read_b128 {q4(R+4*w)}, {VOFF} offset:{L_SW+1024*w}")
    a("s_waitcnt lgkmcnt(0)")
    for st in (16, 8, 4):
        for k in range(st): a(f"v_add_f32 v{R+k}, v{R+k}, v{R+st+k}")
    for k in range(4): a(f"v_min_u32 v{R+k}, -2, v{R+k}")
    a.vmem(f"buffer_store_dwordx4 {q4(R)}, {VOFF}, {sWS}, {sOWN} offen offset:{O_SD} sc1")
    F = S + 8
    fl = [f"buffer_load_dwordx4 {q4(F)}, v23, {sWS}, s81 offen offset:{O_SD} sc1"]
    tf = a.vmem(fl[0])
    a(f"v_lshlrev_b32 {XF}, 16, {XF}")
    a(f"v_and_b32 v10, 1, {LANE}\nv_lshlrev_b32 v10, 2, v10\nv_lshrrev_b32 v9, 5, {LANE}\nv_lshl_add_u32 v10, v9, 1, v10\ns_lshl_b32 s80, s2, 3")
    poll(tf, fl, chk_sent(range(F, F + 4), 8), slp_tail)
    a(f"v_permlane32_swap_b32 v{F}, v{F+2}\nv_permlane32_swap_b32 v{F+1}, v{F+3}")
    a(f"v_add_f32 v{F}, v{F}, v{F+2}\nv_add_f32 v{F+1}, v{F+1}, v{F+3}")
    a(f"v_permlane16_swap_b32 v{F}, v{F+1}\nv_add_f32 v{F}, v{F}, v{F+1}")
    for s in (2, 4, 8): a(f"v_add_f32_dpp v{F}, v{F}, v{F} row_ror:{s} {DPP}")
    a(f"v_mov_b32 v{F+1}, v{F}\nv_permlane16_swap_b32 v{F}, v{F+1}")
    a(f"v_cvt_pk_bf16_f32 v8, v{F}, v{F+1}")
    unpack(F, F + 1, 8)
    a(f"v_mul_f32 v8, {sL2E}, v{F+1}\nv_exp_f32 v8, -v8\nv_add_f32 v8, 1.0, v8\nv_rcp_f32 v8, v8\nv_mul_f32 v8, v8, v{F+1}")
    a(f"v_cvt_pk_bf16_f32 v8, v8, v8\nv_lshlrev_b32 v8, 16, v8\nv_mul_f32 v8, v8, v{F}")
    a(f"v_cvt_pk_bf16_f32 v8, v8, v8\nv_lshlrev_b32 v8, 16, v8\nv_add_f32 v8, v8, {XF}\nv_cvt_pk_bf16_f32 v8, v8, v8")
    a("s_mov_b32 exec_lo, 3\ns_mov_b32 exec_hi, 3")
    a.vmem(f"buffer_store_short v8, v10, {sOUT}, s80 offen")
    if diag:
        a("s_mov_b64 exec, -1\ns_waitcnt vmcnt(0)")
        a("L_fin:")
        stamp("end")
        a("s_waitcnt lgkmcnt(0)")
        for k in range(16): a(f"v_mov_b32 v{S+k}, s{84+k}")
        a(f"s_getreg_b32 s80, hwreg(HW_REG_XCC_ID)\nv_mov_b32 v{S+16}, s80\nv_mov_b32 v{S+17}, {sRETRY}")
        a(f"s_lshl_b32 s80, s2, 3\ns_add_u32 s80, s80, s3\ns_lshl_b32 s80, s80, 7\ns_add_u32 s80, s80, {STAMP_OFF}")
        a("s_mov_b64 exec, 1")
        for k in range(4): a(f"buffer_store_dwordx4 {q4(S+4*k)}, off, {sWS}, s80 offset:{16*k}")
        a(f"buffer_store_dwordx2 {q2(S+16)}, off, {sWS}, s80 offset:64")
    a("L_end:\ns_endpgm")
    body = a.text()
    K = NAME + "_kernel"
    L = lds if lds else L_END
    out = HEADER + f"; @launch grid=(256,1,1) block=(512,1,1) lds={L}\n"
    out += f'.amdgcn_target "amdgcn-amd-amdhsa--gfx950"\n.text\n.globl {K}\n.p2align 8\n.type {K},@function\n{K}:\n'
    out += body
    out += "    .fill 2048, 4, 0xBF810000\n"
    out += f""".section .rodata,"a"
.p2align 6
.amdhsa_kernel {K}
  .amdhsa_next_free_vgpr 256
  .amdhsa_next_free_sgpr 102
  .amdhsa_accum_offset 256
  .amdhsa_group_segment_fixed_size 0
  .amdhsa_kernarg_size 96
  .amdhsa_user_sgpr_count 2
  .amdhsa_user_sgpr_kernarg_segment_ptr 1
  .amdhsa_system_sgpr_workgroup_id_x 1
.end_amdhsa_kernel
"""
    return out

if __name__ == "__main__":
    dst = sys.argv[1] if len(sys.argv) > 1 else f"cdna_kernels/{NAME}.s"
    kw = eval("dict(" + (sys.argv[2] if len(sys.argv) > 2 else "") + ")")
    open(dst, "w").write(gen(**kw))
```

```python
import sys
sys.path.insert(0, "gen")
from asmlib import Asm

NAME = "recurrent_scan__gqa_block_cached__glu_gated_geglu__decode"
HEADER = open("cdna_kernels/" + NAME + ".s.ref").read().split("; Override launch geometry")[0]

STR = 5376
O_OP, O_SD, O_GU, O_ML, O_QP = 0, 2048, 3072, 4864, 5120
STAMP_OFF = 128 << 20
L_RED = 0
L_Q = 2048
QSTR = 272
L_MLW = 4352
L_MLG = 4864
L_HRED = 5120
L_OW = 13312
OWH = 528; OWW = 8 * 528
L_ORED = L_OW + 8 * OWW
L_SW = L_ORED + 4096
L_END = L_SW + 8192

def gen(N=8, layout="w0 w1 w2 s0 s1 s2 g0 g1 g2 g3 g4 g5", k_early=6, k_poll=14, v_gath=14, diag=False, pol="nt", polk=None, polv=None, lds=None,
        stamps="start qpub Qrdy mlpub Prdy PVend hop1 end", flag="byte", noclear=False, b0=True, slp=8, slp_tail=4):
    a = Asm()
    if polk is None: polk = pol
    if polv is None: polv = pol
    toks = layout.split()
    assert len(toks) == 12
    def stepoff(s):
        r = 0
        for pos, t in enumerate(toks):
            if t[0] == 's' and (s >> int(t[1])) & 1: r |= 1 << (12 + pos)
        return r
    LANE, KOFF, VOFF, MW, XF = "v1", "v2", "v3", "v4", "v5"
    HP = 6
    T = list(range(8, 16))
    XA = 16
    Q = 24
    WT = 32
    WA = 64
    S = 96
    KV = 128
    def q4(b): return f"v[{b}:{b+3}]"
    def q2(b): return f"v[{b}:{b+1}]"
    sX, sK, sV, sWQ, sWO, sGU, sWD, sOUT, sDBG, sWS = (f"s[{28+4*i}:{31+4*i}]" for i in range(10))
    sKVB, sT, sG, sIDX, sHH, sCB, sPLO, sPHI, sMSK, sL2E, sSCL, sOWN = (f"s{68+i}" for i in range(12))
    sT2, sRETRY = "s100", "s101"
    nstamp = [0]
    stl = stamps.split(); assert len(stl) == 8
    def stamp(name):
        if diag and name in stl:
            k = stl.index(name)
            a(f"s_memrealtime s[{84+2*k}:{85+2*k}]")
    def srd(dst, ptr, size):
        d = int(dst[2:dst.index(":")])
        a(f"s_mov_b32 s{d}, s{ptr}\ns_mov_b32 s{d+1}, s{ptr+1}\ns_mov_b32 s{d+2}, {size}\ns_mov_b32 s{d+3}, 0x20000")
    DPP = "row_mask:0xf bank_mask:0xf"
    def allreduce(v, op, tmp, steps=(1, 2, 4, 8), cross=True):
        for s in steps:
            a(f"{op}_dpp v{v}, v{v}, v{v} row_ror:{s} {DPP}")
        if cross:
            for sw in ("v_permlane16_swap_b32", "v_permlane32_swap_b32"):
                a(f"v_mov_b32 v{tmp}, v{v}\n{sw} v{v}, v{tmp}\n{op} v{v}, v{v}, v{tmp}")
    def unpack(lo, hi, src):
        a(f"v_lshlrev_b32 v{lo}, 16, v{src}\nv_and_b32 v{hi}, {sMSK}, v{src}")
    def gemv(acc, W, nq, X, t0, t1):
        for i in range(nq):
            for k in range(4):
                unpack(t0, t1, W + 4 * i + k)
                op = "v_mul_f32" if i == 0 else "v_fmac_f32"
                a(f"{op} v{acc+2*k}, v{t0}, v{X+i}\n{op} v{acc+2*k+1}, v{t1}, v{X+i}")
    def reduce8(acc):
        for e in range(4):
            a(f"v_permlane32_swap_b32 v{acc+e}, v{acc+e+4}")
        for e in range(4):
            a(f"v_add_f32 v{acc+e}, v{acc+e}, v{acc+e+4}")
        for e in range(2):
            a(f"v_permlane16_swap_b32 v{acc+e}, v{acc+e+2}")
        for e in range(2):
            a(f"v_add_f32 v{acc+e}, v{acc+e}, v{acc+e+2}")
        for e in range(2):
            a(f"v_add_f32_dpp v{acc+e}, v{acc+e}, v{acc+e} row_ror:8 {DPP}")
    lab = [0]
    def poll(ticket, loads, check, sleep, masked=True):
        lab[0] += 1; n = lab[0]
        if ticket is None: a("s_waitcnt vmcnt(0)")
        else: a.wait_vm(ticket)
        a(f"Lchk{n}:")
        a.hist = []
        check()
        a(f"s_cbranch_vccz Lok{n}")
        a(f"s_add_u32 {sRETRY}, {sRETRY}, 1\ns_cmp_ge_u32 {sRETRY}, 100000\ns_cbranch_scc1 Lok{n}\ns_sleep {sleep}")
        cv = a.count_vm
        a.count_vm = False
        if masked: a("s_mov_b64 exec, vcc")
        for l in loads: a(l)
        if masked: a("s_mov_b64 exec, -1")
        a.count_vm = cv
        a(f"s_waitcnt vmcnt(0)\ns_branch Lchk{n}")
        a(f"Lok{n}:")
    def chk_sent(regs, t):
        def f():
            r = list(regs)
            cur = r.pop(0)
            first = True
            while r:
                if len(r) >= 2:
                    a(f"v_max3_u32 v{t}, v{cur}, v{r[0]}, v{r[1]}"); r = r[2:]
                else:
                    a(f"v_max_u32 v{t}, v{cur}, v{r[0]}"); r = r[1:]
                cur = t
            a(f"v_cmp_eq_u32 vcc, -1, v{cur}")
        return f
    def only_wave(w, name):
        a(f"s_cmp_lg_u32 s3, {w}\ns_cbranch_scc1 {name}")
        a.count_vm = False
    def end_only(name):
        a(f"{name}:")
        a.count_vm = True

    a("s_cmp_ge_u32 s2, 256\ns_cbranch_scc1 L_end")
    if diag:
        a.raw(f"; stamps: {stamps}")
        for k in range(8): a(f"s_mov_b64 s[{84+2*k}:{85+2*k}], 0")
    stamp("start")
    a("s_load_dwordx16 s[4:19], s[0:1], 0\ns_load_dwordx8 s[20:27], s[0:1], 64")
    a("s_getpc_b64 s[82:83]")
    a(f"v_lshrrev_b32 v8, 6, v0\nv_and_b32 {LANE}, 63, v0\nv_lshlrev_b32 v9, 7, v0")
    a("v_readfirstlane_b32 s3, v8")
    a("s_cmp_ge_u32 s3, 2\ns_cbranch_scc1 L_nopf")
    a.count_vm = False
    a("global_load_dword v255, v9, s[82:83]")
    a.count_vm = True
    a("L_nopf:")
    a(f"s_lshr_b32 {sG}, s2, 6\ns_and_b32 {sIDX}, s2, 63")
    a(f"s_mov_b32 {sMSK}, 0xffff0000")
    a(f"v_lshlrev_b32 {VOFF}, 4, {LANE}")
    a(f"v_lshrrev_b32 v8, 3, {LANE}")
    a(f"v_and_b32 v9, 7, {LANE}")
    a(f"v_lshlrev_b32 v10, 5, {LANE}")
    a("v_lshlrev_b32 v11, 3, v8")
    a("v_lshlrev_b32 v12, 4, v8")
    a("v_lshlrev_b32 v13, 15, v8\nv_lshl_add_u32 v13, v9, 4, v13")
    a(f"s_and_b32 {sT}, {sIDX}, 3\ns_lshl_b32 {sT}, {sT}, 8\ns_lshl_b32 {sT2}, s3, 5\ns_add_u32 {sT}, {sT}, {sT2}")
    a(f"s_lshl_b32 s80, {sT}, 1")
    a(f"s_lshl_b32 {sT}, {sT}, 13\ns_lshr_b32 {sT2}, s2, 2\ns_lshl_b32 {sT2}, {sT2}, 7\ns_add_u32 {sT}, {sT}, {sT2}")
    a("s_and_b32 s81, s2, 15\ns_lshl_b32 s81, s81, 7")
    a("s_waitcnt lgkmcnt(0)")
    srd(sX, 4, 2048)
    srd(sWQ, 10, 8 << 20)
    tx = a.vmem(f"buffer_load_dwordx4 {q4(S)}, v10, {sX}, 0 offen")
    tx = a.vmem(f"buffer_load_dwordx4 {q4(S+4)}, v10, {sX}, 0 offen offset:16")
    a.vmem(f"buffer_load_dwordx2 {q2(S+8)}, v11, {sX}, s80 offen")
    txa = a.vmem(f"buffer_load_dwordx4 {q4(S+12)}, v12, {sX}, s81 offen")
    twq = []
    for i in range(4):
        twq.append(a.vmem(f"buffer_load_dwordx4 {q4(WT+4*i)}, v13, {sWQ}, {sT} offen {pol}"))
        if i < 3: a(f"s_add_u32 {sT}, {sT}, 8192")
    srd(sK, 6, 64 << 20)
    a(f"s_lshl_b32 {sKVB}, {sG}, 24")
    for pos, t in enumerate(toks):
        if t[0] in 'gw':
            src = sIDX if t[0] == 'g' else 's3'
            a(f"s_bfe_u32 {sT}, {src}, {(1<<16) | int(t[1])}\ns_lshl_b32 {sT}, {sT}, {12+pos}\ns_or_b32 {sKVB}, {sKVB}, {sT}")
    a(f"v_and_b32 {KOFF}, 3, {LANE}\nv_lshlrev_b32 {KOFF}, 10, {KOFF}")
    a(f"v_bfe_u32 v10, {LANE}, 2, 1\nv_lshl_add_u32 {KOFF}, v10, 8, {KOFF}")
    a(f"v_bfe_u32 v10, {LANE}, 3, 1\nv_lshl_add_u32 {KOFF}, v10, 6, {KOFF}")
    a(f"v_lshrrev_b32 v10, 4, {LANE}\nv_lshl_add_u32 {KOFF}, v10, 4, {KOFF}")
    kt = []; vt = []
    def issueK(n, thr=True):
        for _ in range(n):
            i = len(kt)
            if i >= 32: return
            t, qd = divmod(i, 4)
            if qd == 0 or True:
                a(f"s_add_u32 {sT}, {sKVB}, {stepoff(t)}")
            if thr: a.throttle(N)
            kt.append(a.vmem(f"buffer_load_dwordx4 {q4(KV+4*i)}, {KOFF}, {sK}, {sT} offen offset:{(qd>>1)*512 + (qd&1)*128} {polk}"))
    def issueV(n, thr=True):
        for _ in range(n):
            i = len(vt)
            if i >= 32: return
            t, qd = divmod(i, 4)
            a(f"s_add_u32 {sT}, {sKVB}, {stepoff(t)}")
            if thr: a.throttle(N)
            vt.append(a.vmem(f"buffer_load_dwordx4 {q4(KV+4*i)}, {VOFF}, {sV}, {sT} offen offset:{qd*1024} {polv}"))
    if b0: a("s_barrier")
    issueK(k_early, thr=False)
    srd(sWS, 26, 256 << 20)
    srd(sDBG, 24, 256)
    srd(sV, 8, 64 << 20)
    srd(sWO, 12, 8 << 20)
    srd(sWD, 20, 7 << 20)
    srd(sOUT, 22, 2048)
    a("s_cmp_ge_u32 s2, 128\ns_cselect_b32 s48, s18, s16\ns_cselect_b32 s49, s19, s17")
    a(f"s_mov_b32 s50, {7<<20}\ns_mov_b32 s51, 0x20000")
    a(f"s_mul_i32 {sOWN}, s2, {STR}")
    a(f"s_and_b32 {sHH}, s2, 7\ns_lshl_b32 {sHH}, {sHH}, 2\ns_bfe_u32 {sT}, s2, 0x20003\ns_add_u32 {sHH}, {sHH}, {sT}")
    a(f"s_lshr_b32 {sCB}, s2, 5")
    a(f"s_mov_b32 {sPLO}, 0x05040100\ns_mov_b32 {sPHI}, 0x07060302\ns_mov_b32 {sL2E}, 0x3fb8aa3b\ns_mov_b32 {sSCL}, 0x3db504f3")
    a(f"s_mov_b32 {sRETRY}, 0")
    only_wave(7 if not noclear else 9, "L_noclr")
    a("v_mov_b32 v8, -1\nv_mov_b32 v9, -1\nv_mov_b32 v10, -1\nv_mov_b32 v11, -1")
    for i in range(4):
        a(f"buffer_store_dwordx4 v[8:11], {VOFF}, {sWS}, {sOWN} offen offset:{1024*i} sc1")
    a(f"s_add_u32 {sT}, {sOWN}, 4096")
    a(f"buffer_store_dwordx4 v[8:11], {VOFF}, {sWS}, {sT} offen sc1")
    a("s_nop 1")
    end_only("L_noclr")
    a(f"v_and_b32 v8, 1, {LANE}\nv_lshlrev_b32 v8, 2, v8\nv_lshrrev_b32 v9, 5, {LANE}\nv_lshl_add_u32 v8, v9, 1, v8")
    a(f"s_lshl_b32 {sT}, s2, 3")
    a.vmem(f"buffer_load_ushort {XF}, v8, {sX}, {sT} offen")

    a.wait_vm(txa)
    stamp("xarr")
    X = S + 16
    for i in range(8): unpack(X + 2 * i, X + 2 * i + 1, S + i)
    a(f"v_add_f32 v8, v{X}, v{X+1}\nv_add_f32 v9, v{X+2}, v{X+3}")
    for i in range(4, 16, 2): a(f"v_add_f32 v8, v8, v{X+i}\nv_add_f32 v9, v9, v{X+i+1}")
    a("v_add_f32 v8, v8, v9")
    allreduce(8, "v_add_f32", 9)
    a("v_mul_f32 v8, 0x3a800000, v8")
    for i in range(16): a(f"v_sub_f32 v{X+i}, v{X+i}, v8")
    a(f"v_mul_f32 v10, v{X}, v{X}\nv_mul_f32 v9, v{X+1}, v{X+1}")
    for i in range(2, 16, 2): a(f"v_fmac_f32 v10, v{X+i}, v{X+i}\nv_fmac_f32 v9, v{X+i+1}, v{X+i+1}")
    a("v_add_f32 v10, v10, v9")
    allreduce(10, "v_add_f32", 9)
    a("v_mul_f32 v10, 0x3a800000, v10")
    a("v_cvt_pk_bf16_f32 v9, v8, v10")
    unpack(8, 10, 9)
    a("v_add_f32 v10, 0x3727c5ac, v10\nv_cvt_pk_bf16_f32 v10, v10, v10\nv_lshlrev_b32 v10, 16, v10")
    a("v_sqrt_f32 v10, v10\nv_cvt_pk_bf16_f32 v10, v10, v10\nv_lshlrev_b32 v10, 16, v10\nv_rcp_f32 v10, v10")
    def normalize(lo, src):
        hi = lo + 1
        unpack(lo, hi, src)
        a(f"v_sub_f32 v{lo}, v{lo}, v8\nv_sub_f32 v{hi}, v{hi}, v8\nv_cvt_pk_bf16_f32 v9, v{lo}, v{hi}")
        unpack(lo, hi, 9)
        a(f"v_mul_f32 v{lo}, v{lo}, v10\nv_mul_f32 v{hi}, v{hi}, v10\nv_cvt_pk_bf16_f32 v9, v{lo}, v{hi}")
        unpack(lo, hi, 9)
    XQ = X
    for i in range(2): normalize(XQ + 2 * i, S + 8 + i)
    for i in range(4): normalize(XA + 2 * i, S + 12 + i)
    a.wait_vm(twq[3])
    stamp("wqarr")
    QA = WT + 16
    gemv(QA, WT, 4, XQ, 8, 9)
    reduce8(QA)
    a(f"v_and_b32 v8, 7, {LANE}\nv_lshlrev_b32 v8, 5, v8\nv_lshrrev_b32 v9, 4, {LANE}\nv_lshl_add_u32 v15, v9, 3, v8")
    a(f"s_lshl_b32 {sT}, s3, 8\nv_add_u32 v8, {sT}, v15")
    a(f"ds_write_b64 v8, {q2(QA)} offset:{L_RED}")
    a("s_waitcnt lgkmcnt(0)\ns_barrier")
    stamp("B1")
    only_wave(7, "L_noq")
    a("s_mov_b64 exec, 0xffff")
    for w in range(8): a(f"ds_read_b128 {q4(S+4*w)}, {VOFF} offset:{L_RED+256*w}")
    a("s_waitcnt lgkmcnt(0)")
    for w in range(1, 8):
        for k in range(4): a(f"v_add_f32 v{S+k}, v{S+k}, v{S+4*w+k}")
    a(f"s_add_u32 {sT}, {sOWN}, {O_QP}")
    a(f"buffer_store_dwordx4 {q4(S)}, {VOFF}, {sWS}, {sT} offen sc1")
    a("s_mov_b64 exec, 1\nv_mov_b32 v8, 1\ns_waitcnt vmcnt(0)")
    if flag == "byte":
        a(f"buffer_store_byte v8, off, {sDBG}, s2 sc1")
    else:
        a(f"s_and_b32 {sT}, s2, 63\ns_lshl_b32 {sT}, {sT}, 2\nbuffer_atomic_add v8, off, {sDBG}, {sT} sc1")
    a("s_mov_b64 exec, -1")
    end_only("L_noq")
    stamp("qpub")
    issueK(k_poll - len(kt))
    only_wave(7, "L_nog")
    a(f"v_lshlrev_b32 v14, 2, {LANE}")
    pl = f"buffer_load_dword v13, v14, {sDBG}, 0 offen sc1"
    a(pl)
    a(f"v_bfe_u32 v8, {LANE}, 4, 1\nv_lshrrev_b32 v9, 5, {LANE}\nv_lshl_add_u32 v8, v8, 2, v9\nv_mul_u32_u24 v8, {STR}, v8")
    a(f"v_and_b32 v9, 15, {LANE}\nv_lshl_add_u32 v12, v9, 4, v8")
    a(f"s_mul_i32 {sT2}, {sG}, {64*STR}\ns_add_u32 {sT2}, {sT2}, {O_QP}")
    a("s_mov_b32 s80, " + ("0x01010101" if flag == "byte" else "4"))
    stamp("prepoll")
    poll(None, [pl], lambda: a("v_cmp_ne_u32 vcc, s80, v13"), slp)
    stamp("pollok")
    def qreg(h, t): return (S if t == 0 else WT) + 4 * h
    for h in range(8):
        for t in range(2):
            a(f"buffer_load_dwordx4 {q4(qreg(h,t))}, v12, {sWS}, {sT2} offen sc1")
            if not (h == 7 and t == 1): a(f"s_add_u32 {sT2}, {sT2}, {(2 if t == 0 else 6)*STR}")
    a(f"v_and_b32 v9, 31, {LANE}\nv_lshlrev_b32 v9, 3, v9\nv_lshrrev_b32 v8, 5, {LANE}\nv_mul_u32_u24 v8, {QSTR}, v8\nv_add_u32 v9, v9, v8")
    a("s_waitcnt vmcnt(0)")
    stamp("qarr")
    for k in range(32): a(f"v_add_f32 v{S+k}, v{S+k}, v{WT+k}")
    for hp in range(4):
        b = S + 8 * hp
        for k in range(4): a(f"v_permlane32_swap_b32 v{b+k}, v{b+4+k}")
        for k in range(4): a(f"v_add_f32 v{b+k}, v{b+k}, v{b+4+k}")
        a(f"v_cvt_pk_bf16_f32 v{b}, v{b}, v{b+1}\nv_cvt_pk_bf16_f32 v{b+1}, v{b+2}, v{b+3}")
        a(f"ds_write_b64 v9, {q2(b)} offset:{L_Q+2*hp*QSTR}")
    end_only("L_nog")
    issueK(32)
    a(f"v_lshrrev_b32 v8, 3, {LANE}\nv_mul_u32_u24 v8, {8*7168}, v8\nv_and_b32 v9, 7, {LANE}\nv_lshl_add_u32 v8, v9, 4, v8")
    a(f"s_cmp_eq_u32 s3, 7\ns_cselect_b32 s81, 0x40000000, 0\nv_add_u32 v8, s81, v8")
    a(f"s_and_b32 {sT2}, s2, 15\ns_mul_i32 {sT2}, {sT2}, {64*7168}\ns_bfe_u32 s80, s2, 0x30004\ns_mul_i32 s80, s80, 896\ns_add_u32 {sT2}, {sT2}, s80")
    a(f"s_lshl_b32 s80, s3, 7\ns_add_u32 {sT2}, {sT2}, s80")
    tgu = []
    for i in range(8):
        a.throttle(N)
        tgu.append(a.vmem(f"buffer_load_dwordx4 {q4(WA+4*i)}, v8, {sGU}, {sT2} offen {pol}"))
        if i < 7: a(f"s_add_u32 {sT2}, {sT2}, 7168")
    a("s_waitcnt lgkmcnt(0)\ns_barrier")
    a(f"v_and_b32 v9, 7, {LANE}\nv_mul_u32_u24 v9, {QSTR}, v9\nv_bfe_u32 v10, {LANE}, 3, 1\nv_lshl_add_u32 v9, v10, 6, v9\nv_lshrrev_b32 v10, 4, {LANE}\nv_lshl_add_u32 v9, v10, 4, v9")
    a(f"ds_read_b128 {q4(Q)}, v9 offset:{L_Q}\nds_read_b128 {q4(Q+4)}, v9 offset:{L_Q+128}")
    a("s_waitcnt lgkmcnt(0)")
    stamp("Qrdy")
    ACC = WT
    def qk_mfma(t):
        b = KV + 16 * t; c = ACC + 8 * (t & 1)
        a.wait_vm(kt[4 * t + 3])
        a(f"v_mfma_f32_16x16x32_bf16 {q4(c)}, {q4(b)}, {q4(Q)}, 0")
        a(f"v_mfma_f32_16x16x32_bf16 {q4(c+4)}, {q4(b+8)}, {q4(Q)}, 0")
        a(f"v_mfma_f32_16x16x32_bf16 {q4(c)}, {q4(b+4)}, {q4(Q+4)}, {q4(c)}")
        a(f"v_mfma_f32_16x16x32_bf16 {q4(c+4)}, {q4(b+12)}, {q4(Q+4)}, {q4(c+4)}")
    def qk_fix(t):
        c = ACC + 8 * (t & 1); s = S + 4 * t
        for i in range(4): a(f"v_permlane32_swap_b32 v{c+i}, v{c+4+i}")
        for i in range(4): a(f"v_add_f32_dpp v{c+i}, v{c+4+i}, v{c+i} row_ror:8 {DPP}")
        for i in (0, 2):
            a(f"v_cvt_pk_bf16_f32 v{c+4+i}, v{c+i}, v{c+i+1}")
        for i in (0, 2):
            unpack(c + i, c + i + 1, c + 4 + i)
        for i in range(4): a(f"v_mul_f32 v{c+i}, {sSCL}, v{c+i}")
        for i in (0, 2):
            a(f"v_cvt_pk_bf16_f32 v{c+4+i}, v{c+i}, v{c+i+1}")
        for i in (0, 2):
            unpack(s + i, s + i + 1, c + 4 + i)
        if t == 0:
            a(f"v_max_f32 {MW}, v{s}, v{s+1}")
        else:
            a(f"v_max3_f32 {MW}, {MW}, v{s}, v{s+1}")
        a(f"v_max3_f32 {MW}, {MW}, v{s+2}, v{s+3}")
    qk_mfma(0)
    for t in range(8):
        if t + 1 < 8: qk_mfma(t + 1)
        if t == 4: issueV(4, thr=False)
        qk_fix(t)
    issueV(4, thr=False)
    mw = int(MW[1:])
    allreduce(mw, "v_max_f32", 9, steps=())
    a(f"v_mul_f32 v8, {sL2E}, {MW}")
    for i in range(32): a(f"v_fma_f32 v{S+i}, v{S+i}, {sL2E}, -v8")
    for i in range(32): a(f"v_exp_f32 v{S+i}, v{S+i}")
    a(f"v_add_f32 v11, v{S}, v{S+1}\nv_add_f32 v9, v{S+2}, v{S+3}")
    for i in range(4, 32, 2): a(f"v_add_f32 v11, v11, v{S+i}\nv_add_f32 v9, v9, v{S+i+1}")
    a("v_add_f32 v11, v11, v9")
    allreduce(11, "v_add_f32", 9, steps=())
    a(f"v_mov_b32 v10, {MW}")
    a(f"v_lshlrev_b32 v8, 3, {LANE}\ns_lshl_b32 s80, s3, 6\nv_add_u32 v9, s80, v8")
    a(f"s_mov_b64 exec, 0xff\nds_write_b64 v9, v[10:11] offset:{L_MLW}\ns_mov_b64 exec, -1")
    a("s_waitcnt lgkmcnt(0)\ns_barrier")
    only_wave(7, "L_noml")
    a(f"ds_read_b64 v[10:11], v8 offset:{L_MLW}\ns_waitcnt lgkmcnt(0)")
    a("v_mov_b32 v12, v10")
    allreduce(12, "v_max_f32", 9, steps=(8,))
    a(f"v_sub_f32 v10, v10, v12\nv_mul_f32 v10, {sL2E}, v10\nv_exp_f32 v10, v10\nv_mul_f32 v13, v10, v11")
    allreduce(13, "v_add_f32", 9, steps=(8,))
    a("v_min_u32 v12, -2, v12\nv_min_u32 v13, -2, v13")
    a(f"s_add_u32 {sT}, {sOWN}, {O_ML}\ns_mov_b64 exec, 0xff")
    a(f"buffer_store_dwordx2 v[12:13], v8, {sWS}, {sT} offen sc1")
    a("s_mov_b64 exec, -1")
    end_only("L_noml")
    stamp("mlpub")
    a.wait_vm(tgu[7])
    GA = WT
    gemv(GA, WA, 8, XA, 8, 9)
    reduce8(GA)
    a(f"v_min_u32 v{GA}, -2, v{GA}\nv_min_u32 v{GA+1}, -2, v{GA+1}")
    a(f"s_lshl_b32 {sT2}, s3, 8\ns_add_u32 {sT2}, {sT2}, {sOWN}\nv_add_u32 v8, s81, v15")
    a("s_mov_b32 exec_lo, 0x00ff00ff\ns_mov_b32 exec_hi, 0x00ff00ff")
    a.vmem(f"buffer_store_dwordx2 {q2(GA)}, v8, {sWS}, {sT2} offen offset:{O_GU} sc1")
    a("s_mov_b64 exec, -1")
    issueV(v_gath - len(vt))
    a(f"v_mul_u32_u24 v12, {STR}, {LANE}")
    a(f"s_mul_i32 s80, {sG}, {64*STR}\ns_lshl_b32 {sT2}, s3, 3\ns_add_u32 s80, s80, {sT2}\ns_add_u32 s80, s80, {O_ML}")
    a(f"v_lshrrev_b32 v8, 5, {LANE}\nv_mul_u32_u24 v8, {STR}, v8\nv_and_b32 v9, 31, {LANE}\nv_lshl_add_u32 v13, v9, 4, v8")
    a("v_cmp_lt_u32 vcc, 27, v9\nv_mov_b32 v8, 0x40000000\nv_cndmask_b32 v13, v13, v8, vcc")
    a(f"s_lshr_b32 s81, {sHH}, 2\ns_lshl_b32 s81, s81, 3\ns_add_u32 s81, s81, s3\ns_mul_i32 s81, s81, {2*STR}")
    a(f"s_and_b32 {sT2}, {sHH}, 3\ns_mul_i32 {sT2}, {sT2}, 448\ns_add_u32 s81, s81, {sT2}\ns_add_u32 {sT2}, s81, {128*STR}")
    G = WT
    gl = [f"buffer_load_dwordx2 {q2(G+8)}, v12, {sWS}, s80 offen sc1",
          f"buffer_load_dwordx4 {q4(G)}, v13, {sWS}, s81 offen offset:{O_GU} sc1",
          f"buffer_load_dwordx4 {q4(G+4)}, v13, {sWS}, {sT2} offen offset:{O_GU} sc1"]
    for l in gl: tg = a.vmem(l)
    sv = sT;
    issueV(N - 1)
    poll(tg, gl, chk_sent(range(G, G + 10), 8), slp)
    a(f"v_mov_b32 v10, v{G+8}")
    allreduce(10, "v_max_f32", 9)
    a(f"v_sub_f32 v8, v{G+8}, v10\nv_mul_f32 v8, {sL2E}, v8\nv_exp_f32 v8, v8\nv_mul_f32 v11, v8, v{G+9}")
    allreduce(11, "v_add_f32", 9)
    a("v_rcp_f32 v11, v11")
    a(f"s_lshl_b32 s80, s3, 3\nv_mov_b32 v8, s80")
    a(f"ds_write_b64 v8, v[10:11] offset:{L_MLG}")
    for k in range(4): a(f"v_permlane32_swap_b32 v{G+k}, v{G+4+k}")
    for k in range(4): a(f"v_add_f32 v{G+k}, v{G+k}, v{G+4+k}")
    a(f"s_lshl_b32 s80, s3, 10\nv_add_u32 v8, s80, {VOFF}")
    a(f"ds_write_b128 v8, {q4(G)} offset:{L_HRED}")
    a("s_waitcnt lgkmcnt(0)\ns_barrier")
    a(f"v_and_b32 v8, 7, {LANE}\nv_lshlrev_b32 v9, 3, v8\nds_read_b64 v[10:11], v9 offset:{L_MLG}")
    a(f"v_lshlrev_b32 v8, 10, v8\nv_bfe_u32 v9, {LANE}, 3, 1\nv_lshl_add_u32 v8, v9, 9, v8\nv_lshrrev_b32 v9, 4, {LANE}\nv_lshl_add_u32 v8, v9, 4, v8")
    a(f"s_lshl_b32 s80, s3, 6\nv_add_u32 v8, s80, v8\nds_read_b128 {q4(G)}, v8 offset:{L_HRED}")
    a("s_waitcnt lgkmcnt(0)")
    stamp("Prdy")
    a(f"v_sub_f32 v10, {MW}, v10\nv_mul_f32 v10, {sL2E}, v10\nv_exp_f32 v10, v10\nv_mul_f32 v10, v10, v11")
    for i in range(0, 32, 2):
        a(f"v_mul_f32 v{S+i}, v{S+i}, v10\nv_mul_f32 v{S+i+1}, v{S+i+1}, v10\nv_cvt_pk_bf16_f32 v{S+i//2}, v{S+i}, v{S+i+1}")
    for m in ("quad_perm:[1,0,3,2]", "quad_perm:[2,3,0,1]", "row_half_mirror"):
        for k in range(4): a(f"v_add_f32_dpp v{G+k}, v{G+k}, v{G+k} {m} {DPP}")
    for i in (0, 2): a(f"v_cvt_pk_bf16_f32 v{G+4+i}, v{G+i}, v{G+i+1}")
    for i in (0, 2): unpack(G + i, G + i + 1, G + 4 + i)
    for k in range(4): a(f"v_mov_b32_dpp v{G+4+k}, v{G+k} row_ror:8 {DPP}")
    a("s_mov_b32 s80, 0x3d372713\ns_mov_b32 s81, 0xc0135761")
    for k in range(4): a(f"v_mul_f32 v{G+8+k}, v{G+k}, v{G+k}")
    for k in range(4): a(f"v_fma_f32 v{G+8+k}, v{G+8+k}, s80, 1.0")
    for k in range(4): a(f"v_mul_f32 v{G+8+k}, v{G+8+k}, v{G+k}")
    for k in range(4): a(f"v_mul_f32 v{G+8+k}, s81, v{G+8+k}")
    for k in range(4): a(f"v_exp_f32 v{G+8+k}, v{G+8+k}")
    for k in range(4): a(f"v_add_f32 v{G+8+k}, 1.0, v{G+8+k}")
    for k in range(4): a(f"v_rcp_f32 v{G+8+k}, v{G+8+k}")
    for k in range(4): a(f"v_mul_f32 v{G+k}, v{G+k}, v{G+8+k}")
    for i in (0, 2): a(f"v_cvt_pk_bf16_f32 v{G+8+i}, v{G+i}, v{G+i+1}")
    for i in (0, 2): unpack(G + i, G + i + 1, G + 8 + i)
    for k in range(4): a(f"v_mul_f32 v{G+k}, v{G+k}, v{G+4+k}")
    AO = Q
    for k in range(4): a(f"v_mov_b32 v{AO+k}, 0")
    a("s_mov_b32 exec_lo, 0x00020002\ns_mov_b32 exec_hi, 0x00020002")
    a(f"v_cvt_pk_bf16_f32 v{AO+2}, v{G}, v{G+1}\nv_cvt_pk_bf16_f32 v{AO+3}, v{G+2}, v{G+3}")
    a("s_mov_b64 exec, -1")
    VT = S + 16
    def transp(dst, b, e, nq=4):
        sel = sPHI if e & 1 else sPLO
        for t in range(nq):
            a(f"v_perm_b32 v{dst+t}, v{b+8*t+4+(e>>1)}, v{b+8*t+(e>>1)}, {sel}")
    def pv(tau):
        b = KV + 32 * tau
        a.wait_vm(vt[8 * tau + 7])
        transp(VT, b, 0)
        for e in range(8):
            if e < 7: transp(VT + 4 * ((e + 1) & 1), b, e + 1)
            c = q4(WA + 4 * e) if tau else "0"
            a(f"v_mfma_f32_16x16x32_bf16 {q4(WA+4*e)}, {q4(VT+4*(e&1))}, {q4(S+4*tau)}, {c}")
    a(f"v_lshrrev_b32 v8, 5, {LANE}\nv_lshlrev_b32 v8, 16, v8\nv_bfe_u32 v9, {LANE}, 4, 1\nv_lshl_add_u32 v8, v9, 13, v8")
    a(f"v_and_b32 v9, 15, {LANE}\nv_lshl_add_u32 v12, v9, 4, v8")
    a(f"s_and_b32 s80, s3, 1\ns_lshl_b32 s80, s80, 6\ns_lshr_b32 s81, s3, 1\ns_add_u32 s80, s80, s81\ns_lshl_b32 s81, {sHH}, 7\ns_add_u32 s80, s80, s81")
    a(f"s_lshl_b32 s80, s80, 11\ns_lshl_b32 s81, {sCB}, 8\ns_add_u32 s80, s80, s81")
    a(f"v_lshrrev_b32 v8, 4, {LANE}\nv_lshlrev_b32 v8, 13, v8\nv_lshl_add_u32 v13, v9, 4, v8")
    a(f"s_cmp_eq_u32 s3, 7\ns_cselect_b32 {sT2}, 0x40000000, 0\nv_add_u32 v13, {sT2}, v13")
    a(f"s_mul_i32 {sT2}, {sHH}, 112\ns_lshl_b32 s82, s3, 4\ns_add_u32 {sT2}, {sT2}, s82\ns_lshl_b32 {sT2}, {sT2}, 11\ns_add_u32 s81, s81, {sT2}")
    done = 0
    def pv_ready():
        nonlocal done
        while done < 4 and len(vt) >= 8 * done + 8 and (a.vm - vt[8 * done + 7]) >= N - 1:
            pv(done); done += 1
    pv_ready()
    while len(vt) < 32:
        issueV(1); pv_ready()
    tw = []
    for i in range(4):
        tw.append(a.vmem(f"buffer_load_dwordx4 {q4(WT+16+4*i)}, v13, {sWD}, s81 offen offset:{(i&1)*2048} {pol}"))
        if i == 1: a("s_add_u32 s81, s81, 4096")
    for i in range(4):
        tw.append(a.vmem(f"buffer_load_dwordx4 {q4(WT+4*i)}, v12, {sWO}, s80 offen {pol}"))
        if i < 3: a("s_add_u32 s80, s80, 16384")
    a(f"v_and_b32 v8, 7, {LANE}\nv_mul_u32_u24 v8, {OWH}, v8\nv_lshrrev_b32 v9, 3, {LANE}\nv_lshl_add_u32 v8, v9, 4, v8\ns_mul_i32 s82, s3, {OWW}\nv_add_u32 v16, s82, v8")
    a(f"s_mul_i32 s82, s3, {OWH}\nv_lshlrev_b32 v17, 3, {LANE}\nv_add_u32 v17, s82, v17")
    a(f"v_lshlrev_b32 v18, 2, {LANE}")
    a(f"s_lshl_b32 s82, s3, 8\ns_add_u32 s82, s82, {sOWN}")
    a(f"v_lshrrev_b32 v8, 4, {LANE}\nv_mul_u32_u24 v8, {STR}, v8\nv_and_b32 v9, 15, {LANE}\nv_lshl_add_u32 v19, v9, 4, v8")
    a(f"s_lshr_b32 s83, {sHH}, 3\ns_lshl_b32 s83, s83, 3\ns_add_u32 s83, s83, s3\ns_mul_i32 s83, s83, {8*STR}\ns_and_b32 {sT2}, {sHH}, 7\ns_lshl_b32 {sT2}, {sT2}, 8\ns_add_u32 s83, s83, {sT2}")
    a(f"s_add_u32 {sT2}, s83, {4*STR}")
    SEL = Q + 4
    a(f"v_and_b32 v8, 1, {LANE}\nv_lshlrev_b32 v8, 4, v8\nv_mov_b32 v9, 0x3f80\nv_lshlrev_b32 v9, v8, v9\nv_bfe_u32 v8, {LANE}, 1, 2")
    for k in range(4):
        a(f"v_cmp_eq_u32 vcc, {k}, v8\nv_cndmask_b32 v{SEL+k}, 0, v9, vcc")
    a(f"v_and_b32 v8, 15, {LANE}\nv_lshlrev_b32 v20, 5, v8\nv_bfe_u32 v9, {LANE}, 4, 1\nv_lshl_add_u32 v20, v9, 4, v20\ns_lshl_b32 s80, s3, 9\nv_add_u32 v20, s80, v20")
    a(f"v_and_b32 v9, 7, {LANE}\nv_lshlrev_b32 v21, 9, v9\nv_lshrrev_b32 v9, 4, {LANE}\nv_lshl_add_u32 v21, v9, 4, v21\ns_lshl_b32 s80, s3, 6\nv_add_u32 v21, s80, v21")
    a(f"v_lshlrev_b32 v22, 6, v8\ns_lshl_b32 s80, s3, 10\nv_add_u32 v22, s80, v22")
    a(f"v_lshrrev_b32 v8, 1, {LANE}\nv_mul_u32_u24 v8, {STR}, v8\nv_and_b32 v9, 1, {LANE}\nv_lshl_add_u32 v23, v9, 4, v8")
    a(f"s_mul_i32 s81, {sCB}, {32*STR}\ns_and_b32 s80, s2, 31\ns_lshl_b32 s80, s80, 5\ns_add_u32 s81, s81, s80")
    while done < 4:
        pv(done); done += 1
    stamp("PVend")
    for e in range(4):
        for i in range(4):
            a(f"v_mov_b32_dpp v{WA+4*e+i}, v{WA+4*(e+4)+i} row_ror:8 row_mask:0xf bank_mask:0xc")
        a(f"ds_write_b128 v16, {q4(WA+4*e)} offset:{L_OW+128*e}")
    a("s_waitcnt lgkmcnt(0)\ns_barrier")
    R = S
    for w in range(8): a(f"ds_read_b64 {q2(R+2*w)}, v17 offset:{L_OW+OWW*w}")
    a("s_waitcnt lgkmcnt(0)")
    for st in (8, 4, 2):
        for k in range(st): a(f"v_add_f32 v{R+k}, v{R+k}, v{R+st+k}")
    a(f"v_cvt_pk_bf16_f32 v{R}, v{R}, v{R+1}\nv_min_u32 v{R}, -2, v{R}")
    for k in (1, 2, 3): a(f"v_mov_b32_dpp v{R+k}, v{R} quad_perm:[{k},{k},{k},{k}] {DPP}")
    a("s_mov_b32 exec_lo, 0x11111111\ns_mov_b32 exec_hi, 0x11111111")
    a.vmem(f"buffer_store_dwordx4 {q4(R)}, v18, {sWS}, s82 offen sc1")
    a("s_mov_b64 exec, -1")
    GO = S + 8
    ol = [f"buffer_load_dwordx4 {q4(GO)}, v19, {sWS}, s83 offen sc1",
          f"buffer_load_dwordx4 {q4(GO+4)}, v19, {sWS}, {sT2} offen sc1"]
    for l in ol: to = a.vmem(l)
    BW = KV
    a.wait_vm(tw[7])
    for e in range(8): transp(BW + 4 * e, WT, e)
    poll(to, ol, chk_sent(range(GO, GO + 8), 8), slp_tail)
    stamp("hop1")
    a(f"v_mfma_f32_16x16x32_bf16 {q4(R)}, {q4(SEL)}, {q4(GO)}, 0")
    a(f"v_mfma_f32_16x16x32_bf16 {q4(R)}, {q4(SEL)}, {q4(GO+4)}, {q4(R)}")
    a(f"ds_write_b128 v20, {q4(R)} offset:{L_ORED}")
    a("s_waitcnt lgkmcnt(0)\ns_barrier")
    a(f"ds_read_b128 {q4(R)}, v21 offset:{L_ORED}\ns_waitcnt lgkmcnt(0)")
    for m in ("quad_perm:[1,0,3,2]", "quad_perm:[2,3,0,1]", "row_half_mirror"):
        for k in range(4): a(f"v_add_f32_dpp v{R+k}, v{R+k}, v{R+k} {m} {DPP}")
    a("s_mov_b32 exec_lo, 0x00010001\ns_mov_b32 exec_hi, 0x00010001")
    a(f"v_cvt_pk_bf16_f32 v{AO}, v{R}, v{R+1}\nv_cvt_pk_bf16_f32 v{AO+1}, v{R+2}, v{R+3}")
    a("s_mov_b64 exec, -1\ns_nop 1")
    for e in range(8): a(f"v_mfma_f32_16x16x32_bf16 {q4(WA+4*e)}, {q4(AO)}, {q4(BW+4*e)}, 0")
    a("s_mov_b64 exec, 0xffff")
    for e in range(8): a(f"ds_write_b64 v22, {q2(WA+4*e)} offset:{L_SW+8*e}")
    a("s_mov_b64 exec, -1")
    a("s_waitcnt lgkmcnt(0)\ns_barrier")
    if not diag:
        a("s_cmp_lg_u32 s3, 0\ns_cbranch_scc1 L_end")
    else:
        a("s_cmp_lg_u32 s3, 0\ns_cbranch_scc1 L_fin")
    for w in range(8): a(f"ds_read_b128 {q4(R+4*w)}, {VOFF} offset:{L_SW+1024*w}")
    a("s_waitcnt lgkmcnt(0)")
    for st in (16, 8, 4):
        for k in range(st): a(f"v_add_f32 v{R+k}, v{R+k}, v{R+st+k}")
    for k in range(4): a(f"v_min_u32 v{R+k}, -2, v{R+k}")
    a.vmem(f"buffer_store_dwordx4 {q4(R)}, {VOFF}, {sWS}, {sOWN} offen offset:{O_SD} sc1")
    F = S + 8
    fl = [f"buffer_load_dwordx4 {q4(F)}, v23, {sWS}, s81 offen offset:{O_SD} sc1"]
    tf = a.vmem(fl[0])
    a(f"v_lshlrev_b32 {XF}, 16, {XF}")
    a(f"v_and_b32 v10, 1, {LANE}\nv_lshlrev_b32 v10, 2, v10\nv_lshrrev_b32 v9, 5, {LANE}\nv_lshl_add_u32 v10, v9, 1, v10\ns_lshl_b32 s80, s2, 3")
    poll(tf, fl, chk_sent(range(F, F + 4), 8), slp_tail)
    a(f"v_permlane32_swap_b32 v{F}, v{F+2}\nv_permlane32_swap_b32 v{F+1}, v{F+3}")
    a(f"v_add_f32 v{F}, v{F}, v{F+2}\nv_add_f32 v{F+1}, v{F+1}, v{F+3}")
    a(f"v_permlane16_swap_b32 v{F}, v{F+1}\nv_add_f32 v{F}, v{F}, v{F+1}")
    for s in (2, 4, 8): a(f"v_add_f32_dpp v{F}, v{F}, v{F} row_ror:{s} {DPP}")
    a(f"v_mov_b32 v{F+1}, v{F}\nv_permlane16_swap_b32 v{F}, v{F+1}")
    a(f"v_cvt_pk_bf16_f32 v8, v{F}, v{F+1}")
    unpack(F, F + 1, 8)
    a(f"v_mul_f32 v8, {sL2E}, v{F+1}\nv_exp_f32 v8, -v8\nv_add_f32 v8, 1.0, v8\nv_rcp_f32 v8, v8\nv_mul_f32 v8, v8, v{F+1}")
    a(f"v_cvt_pk_bf16_f32 v8, v8, v8\nv_lshlrev_b32 v8, 16, v8\nv_mul_f32 v8, v8, v{F}")
    a(f"v_cvt_pk_bf16_f32 v8, v8, v8\nv_lshlrev_b32 v8, 16, v8\nv_add_f32 v8, v8, {XF}\nv_cvt_pk_bf16_f32 v8, v8, v8")
    a("s_mov_b32 exec_lo, 3\ns_mov_b32 exec_hi, 3")
    a.vmem(f"buffer_store_short v8, v10, {sOUT}, s80 offen")
    if diag:
        a("s_mov_b64 exec, -1\ns_waitcnt vmcnt(0)")
        a("L_fin:")
        stamp("end")
        a("s_waitcnt lgkmcnt(0)")
        for k in range(16): a(f"v_mov_b32 v{S+k}, s{84+k}")
        a(f"s_getreg_b32 s80, hwreg(HW_REG_XCC_ID)\nv_mov_b32 v{S+16}, s80\nv_mov_b32 v{S+17}, {sRETRY}")
        a(f"s_lshl_b32 s80, s2, 3\ns_add_u32 s80, s80, s3\ns_lshl_b32 s80, s80, 7\ns_add_u32 s80, s80, {STAMP_OFF}")
        a("s_mov_b64 exec, 1")
        for k in range(4): a(f"buffer_store_dwordx4 {q4(S+4*k)}, off, {sWS}, s80 offset:{16*k}")
        a(f"buffer_store_dwordx2 {q2(S+16)}, off, {sWS}, s80 offset:64")
    a("L_end:\ns_endpgm")
    body = a.text()
    K = NAME + "_kernel"
    L = lds if lds else L_END
    out = HEADER + f"; @launch grid=(256,1,1) block=(512,1,1) lds={L}\n"
    out += f'.amdgcn_target "amdgcn-amd-amdhsa--gfx950"\n.text\n.globl {K}\n.p2align 8\n.type {K},@function\n{K}:\n'
    out += body
    out += "    .fill 2048, 4, 0xBF810000\n"
    out += f""".section .rodata,"a"
.p2align 6
.amdhsa_kernel {K}
  .amdhsa_next_free_vgpr 256
  .amdhsa_next_free_sgpr 102
  .amdhsa_accum_offset 256
  .amdhsa_group_segment_fixed_size 0
  .amdhsa_kernarg_size 96
  .amdhsa_user_sgpr_count 2
  .amdhsa_user_sgpr_kernarg_segment_ptr 1
  .amdhsa_system_sgpr_workgroup_id_x 1
.end_amdhsa_kernel
"""
    return out

if __name__ == "__main__":
    dst = sys.argv[1] if len(sys.argv) > 1 else f"cdna_kernels/{NAME}.s"
    kw = eval("dict(" + (sys.argv[2] if len(sys.argv) > 2 else "") + ")")
    open(dst, "w").write(gen(**kw))
```

```python
import re

TRANS = ("v_exp_f32", "v_log_f32", "v_rcp_f32", "v_rsq_f32", "v_sqrt_f32", "v_sin_f32", "v_cos_f32")

def regs_of(tok):
    tok = tok.strip()
    neg = tok.startswith("-")
    if neg: tok = tok[1:]
    if tok.startswith("abs(") or tok.startswith("|"):
        tok = tok.strip("|").replace("abs(", "").replace(")", "")
    m = re.fullmatch(r"([vs])\[(\d+):(\d+)\]", tok)
    if m: return [(m.group(1), i) for i in range(int(m.group(2)), int(m.group(3)) + 1)]
    m = re.fullmatch(r"([vs])(\d+)", tok)
    if m: return [(m.group(1), int(m.group(2)))]
    if tok == "vcc": return [("s", "vcc")]
    if tok == "exec": return [("s", "exec")]
    if tok == "m0": return [("s", "m0")]
    return []

class Ins:
    def __init__(self, text):
        self.text = text
        t = text.split(";")[0].strip()
        parts = t.split(None, 1)
        self.op = parts[0]
        rest = parts[1] if len(parts) > 1 else ""
        ops = [x.strip() for x in rest.split(",")] if rest else []
        self.mods = ""
        if ops:
            last = ops[-1].split(None, 1)
            ops[-1] = last[0]
            self.mods = last[1] if len(last) > 1 else ""
        if "quad_perm" in rest:
            i = rest.index("quad_perm")
            head = rest[:i]
            ops = [x.strip() for x in head.split(",")]
            self.mods = rest[i:]
        self.ops = ops
        op = self.op
        self.valu = op.startswith("v_") and not op.startswith("v_mfma")
        self.mfma = op.startswith("v_mfma")
        self.vmem = op.startswith("buffer_") or op.startswith("global_")
        self.ds = op.startswith("ds_")
        self.salu = op.startswith("s_")
        self.dpp = "_dpp" in op
        self.trans = any(op.startswith(x) for x in TRANS)
        self.permlane = op.startswith("v_permlane")
        self.readlane = op.startswith("v_readlane") or op.startswith("v_readfirstlane")
        self.dot = op.startswith("v_dot")
        R = [regs_of(x) for x in ops]
        self.w = []; self.r = []; self.srcC = []; self.srcAB = []
        self.states = 1
        if op == "s_nop":
            self.states = int(ops[0], 0) + 1
        elif self.mfma:
            self.w = R[0]; self.srcAB = R[1] + R[2]; self.srcC = R[3]; self.r = self.srcAB + self.srcC
            self.passes = 8 if "32x32" in op else 4
        elif self.valu:
            self.w = list(R[0]); self.r = [x for y in R[1:] for x in y]
            if self.permlane: self.w += R[1]; self.r += R[0]
            if op.startswith("v_fmac") or op.startswith("v_dot2c") or (self.dpp and ("bank_mask:0xf" not in self.mods or "row_mask:0xf" not in self.mods)):
                self.r += R[0]
            if op.startswith("v_add_co") or op.startswith("v_sub_co") or op.startswith("v_addc_co"):
                self.w += R[1]; self.r = [x for y in R[2:] for x in y]
            if op.startswith("v_cndmask") and len(ops) == 3: self.r += [("s", "vcc")]
        elif self.vmem:
            if "load" in op and " lds" not in (" " + self.mods):
                self.w = R[0]; self.r = [x for y in R[1:] for x in y]
            else:
                self.r = [x for y in R for x in y]
                if "atomic" in op and "sc0" in self.mods: self.w = R[0]
            self.widestore = ("store" in op and ("x3" in op or "x4" in op))
            self.sdata = (R[0] if op.startswith("buffer_store") else (R[1] if op.startswith("global_store") else []))
        elif self.ds:
            if op.startswith("ds_read") or "permute" in op or "swizzle" in op or "_rtn" in op:
                self.w = R[0]; self.r = [x for y in R[1:] for x in y]
            else:
                self.r = [x for y in R for x in y]
        else:
            if op.startswith("s_cmp") or op.startswith("s_cbranch") or op in ("s_waitcnt", "s_barrier", "s_branch", "s_endpgm", "s_sleep", "s_setprio"):
                self.r = [x for y in R for x in y]
            elif R:
                self.w = R[0]; self.r = [x for y in R[1:] for x in y]
                if "saveexec" in op: self.w += [("s", "exec")]

def need(p, c):
    n = 0
    pw = set(p.w)
    if not pw and not p.mfma and not getattr(p, "widestore", False): return 0
    cr = set(c.r); cw = set(c.w)
    vw = {x for x in pw if x[0] == "v"}; sw = {x for x in pw if x[0] == "s"}
    if p.valu:
        if c.mfma and vw & cr: n = max(n, 2)
        if c.dpp and vw & cr: n = max(n, 2)
        if c.permlane and vw & cr: n = max(n, 2)
        if c.readlane and vw & cr: n = max(n, 1)
        if p.trans and c.valu and not c.trans and vw & cr: n = max(n, 1)
        if p.trans and (c.vmem or c.ds or c.mfma) and vw & cr: n = max(n, 2)
        if p.dot and (c.valu or c.mfma or c.vmem or c.ds) and c.op != p.op and vw & (cr | cw): n = max(n, 3)
        if sw:
            if c.valu and sw & cr: n = max(n, 4 if c.readlane else 2)
            if c.vmem and sw & cr: n = max(n, 5)
            if c.salu and sw & cr: n = max(n, 2)
            if ("s", "vcc") in sw and c.op.startswith("s_cbranch_vcc"): n = max(n, 5)
    if p.mfma:
        P = p.passes
        far = {4: 8, 8: 12}[P]
        if c.mfma:
            if vw & set(c.srcAB): n = max(n, far)
            if vw & set(c.srcC):
                if c.srcC == p.w and c.passes == P: n = max(n, 0)
                else: n = max(n, far - 2)
            elif vw & cw: n = max(n, far - 2)
        elif (c.valu or c.vmem or c.ds) and vw & (cr | cw): n = max(n, far)
        if c.valu and set(p.srcC) & cw: n = max(n, {4: 3, 8: 7}[P])
    if getattr(p, "widestore", False):
        if set(p.sdata) & cw: n = max(n, 2)
    if p.salu and ("s", "m0") in pw and c.vmem and " lds" in (" " + c.mods): n = max(n, 1)
    if p.salu and ("s", "exec") in pw and c.dpp: n = max(n, 1)
    return n

class Asm:
    def __init__(self):
        self.lines = []
        self.hist = []
        self.vm = 0
        self.count_vm = True
        self.vm7 = 0
        self.count_vm7 = True
        self.nops = 0
    def raw(self, s): self.lines.append(s)
    def comment(self, s): self.lines.append("    ; " + s)
    def label(self, name):
        self.lines.append(name + ":")
    def __call__(self, text):
        for t in text.strip().split("\n"):
            t = t.strip()
            if not t or t.startswith(";"):
                if t: self.lines.append("    " + t)
                continue
            if t.endswith(":"):
                self.label(t[:-1]); continue
            self.emit(t)
    def emit(self, t):
        c = Ins(t)
        dist = 0; pad = 0
        for p in reversed(self.hist):
            n = need(p, c)
            if n > dist: pad = max(pad, n - dist)
            dist += p.states
            if dist > 20: break
        if pad:
            self.nops += pad
            nop = Ins(f"s_nop {pad-1}")
            self.lines.append(f"    s_nop {pad-1}")
            self.hist.append(nop)
        self.lines.append("    " + t)
        self.hist.append(c)
        self.hist = self.hist[-24:]
        if c.vmem and self.count_vm7:
            self.vm7 += 1
        if c.vmem and self.count_vm:
            self.vm += 1
            return self.vm
        return None
    def vmem(self, t):
        return self.emit(t)
    def wait_vm(self, ticket):
        n = self.vm - ticket
        assert 0 <= n <= 63, n
        self.emit(f"s_waitcnt vmcnt({n})")
    def wait_vm7(self, ticket7):
        n = self.vm7 - ticket7
        assert 0 <= n <= 63, n
        self.emit(f"s_waitcnt vmcnt({n})")
    def throttle(self, depth):
        self.emit(f"s_waitcnt vmcnt({depth-1})")
    def text(self): return "\n".join(self.lines) + "\n"
```

```python
import sys
sys.path.insert(0, "gen")
from asmlib import Asm

NAME = "recurrent_scan__gqa_block_cached__glu_gated_geglu__decode"
HEADER = open("cdna_kernels/" + NAME + ".s.ref").read().split("; Override launch geometry")[0]

STR = 5376
O_OP, O_SD, O_GU, O_ML, O_QP = 0, 2048, 3072, 4864, 5120
STAMP_OFF = 128 << 20
L_RED = 0
L_Q = 2048
QSTR = 272
L_MLW = 4352
L_MLG = 4864
L_CNT = 4992
L_HRED = 5120
L_OW = 13312
OWH = 528; OWW = 8 * 528
L_ORED = L_OW + 8 * OWW
L_SW = L_ORED + 4096
L_END = L_SW + 8192

def gen(N=4, layout="w0 w1 w2 s0 s1 s2 g0 g1 g2 g3 g4 g5", k_early=4, kp=15, kq=38, vg=70, diag=False,
        pol="nt", polk=None, polv=None, lds=None, NW=None,
        stamps="start qpub Qrdy mlpub Prdy PVend hop1 end", spin=0, slp=8, slp_tail=4, touch=True, skip7=True, kg=27, oracle=None, spinx=None):
    a = Asm()
    if polk is None: polk = pol
    if polv is None: polv = pol
    if NW is None: NW = 12
    toks = layout.split()
    assert len(toks) == 12
    def stepoff(s):
        if oracle:
            return ((s & 1) << 18) ^ (((s >> 1) & 1) * ((1 << 19) | (1 << 14))) ^ (((s >> 2) & 1) * ((1 << 20) | (1 << 12)))
        r = 0
        for pos, t in enumerate(toks):
            if t[0] == 's' and (s >> int(t[1])) & 1: r |= 1 << (12 + pos)
        return r
    LANE, KOFF, VOFF, MW, XF = "v1", "v2", "v3", "v4", "v5"
    GOFF, FS = "v6", "v7"
    XA = 16
    Q = 24
    WT = 32
    WA = 64
    S = 96
    KV = 128
    def q4(b): return f"v[{b}:{b+3}]"
    def q2(b): return f"v[{b}:{b+1}]"
    sX, sK, sV, sWQ, sWO, sGU, sWD, sOUT, sDBG, sWS = (f"s[{28+4*i}:{31+4*i}]" for i in range(10))
    sKVB, sT, sG, sIDX, sHH, sCB, sPLO, sPHI, sMSK, sL2E, sSCL, sOWN = (f"s{68+i}" for i in range(12))
    sT2, sRETRY = "s100", "s101"
    sGUO, sOOB, sWOO, sWDO, sOPS, sOG0, sOG1, sSDG, sML, sH0, sH1, sQG = (f"s{4+i}" for i in range(12))
    stl = stamps.split(); assert len(stl) == 8
    def stamp(name):
        if diag and name in stl:
            k = stl.index(name)
            a(f"s_memrealtime s[{84+2*k}:{85+2*k}]")
    def srd(dst, ptr, size):
        d = int(dst[2:dst.index(":")])
        a(f"s_mov_b32 s{d}, s{ptr}\ns_mov_b32 s{d+1}, s{ptr+1}\ns_mov_b32 s{d+2}, {size}\ns_mov_b32 s{d+3}, 0x20000")
    DPP = "row_mask:0xf bank_mask:0xf"
    def allreduce(v, op, tmp, steps=(1, 2, 4, 8), cross=True):
        for s in steps:
            a(f"{op}_dpp v{v}, v{v}, v{v} row_ror:{s} {DPP}")
        if cross:
            for sw in ("v_permlane16_swap_b32", "v_permlane32_swap_b32"):
                a(f"v_mov_b32 v{tmp}, v{v}\n{sw} v{v}, v{tmp}\n{op} v{v}, v{v}, v{tmp}")
    def unpack(lo, hi, src):
        a(f"v_lshlrev_b32 v{lo}, 16, v{src}\nv_and_b32 v{hi}, {sMSK}, v{src}")
    def gemv(acc, W, rng, X, t0, t1):
        for i in rng:
            for k in range(4):
                unpack(t0, t1, W + 4 * i + k)
                op = "v_mul_f32" if i == 0 else "v_fmac_f32"
                a(f"{op} v{acc+2*k}, v{t0}, v{X+i}\n{op} v{acc+2*k+1}, v{t1}, v{X+i}")
    def reduce8(acc):
        for e in range(4): a(f"v_permlane32_swap_b32 v{acc+e}, v{acc+e+4}")
        for e in range(4): a(f"v_add_f32 v{acc+e}, v{acc+e}, v{acc+e+4}")
        for e in range(2): a(f"v_permlane16_swap_b32 v{acc+e}, v{acc+e+2}")
        for e in range(2): a(f"v_add_f32 v{acc+e}, v{acc+e}, v{acc+e+2}")
        for e in range(2): a(f"v_add_f32_dpp v{acc+e}, v{acc+e}, v{acc+e} row_ror:8 {DPP}")
    lab = [0]
    def giveup(n): return f"s_add_u32 {sRETRY}, {sRETRY}, 1\ns_cmp_ge_u32 {sRETRY}, 200000\ns_cbranch_scc1 Lok{n}"
    def poll(loads, check, sleep):
        lab[0] += 1; n = lab[0]
        a(f"Lchk{n}:")
        a.hist = []
        check()
        a(f"s_cbranch_vccz Lok{n}")
        a(giveup(n) + f"\ns_sleep {sleep}")
        cv = a.count_vm; a.count_vm = False; a.count_vm7 = False
        a("s_mov_b64 exec, vcc")
        for l in loads: a(l)
        a("s_mov_b64 exec, -1")
        a.count_vm = cv; a.count_vm7 = True
        a(f"s_waitcnt vmcnt(0)\ns_branch Lchk{n}")
        a(f"Lok{n}:")
    def lds_wait(off, val, t):
        lab[0] += 1; n = lab[0]
        a(f"v_mov_b32 v{t+1}, 0")
        a(f"Lchk{n}:")
        a(f"ds_read_b32 v{t}, v{t+1} offset:{off}\ns_waitcnt lgkmcnt(0)\nv_cmp_ne_u32 vcc, {val}, v{t}\ns_cbranch_vccz Lok{n}")
        a(giveup(n) + f"\ns_sleep 1\ns_branch Lchk{n}")
        a(f"Lok{n}:")
    def lds_signal(off, t):
        a(f"v_mov_b32 v{t}, 0\nv_mov_b32 v{t+1}, 1\ns_mov_b64 exec, 1\nds_add_u32 v{t}, v{t+1} offset:{off}\ns_mov_b64 exec, -1")
    def chk_sent(regs, t):
        def f():
            r = list(regs); cur = r.pop(0)
            while r:
                if len(r) >= 2:
                    a(f"v_max3_u32 v{t}, v{cur}, v{r[0]}, v{r[1]}"); r = r[2:]
                else:
                    a(f"v_max_u32 v{t}, v{cur}, v{r[0]}"); r = r[1:]
                cur = t
            a(f"v_cmp_eq_u32 vcc, -1, v{cur}")
        return f
    def w7_begin():
        lab[0] += 1; n = lab[0]
        a(f"s_cmp_lg_u32 s3, 7\ns_cbranch_scc1 Lw7_{n}")
        a.count_vm = False
        return n
    def w7_end(n):
        a(f"s_nop 1\nLw7_{n}:")
        a.count_vm = True

    a("s_cmp_ge_u32 s2, 256\ns_cbranch_scc1 L_end")
    if diag:
        a.raw(f"; stamps: {stamps}")
        for k in range(8): a(f"s_mov_b64 s[{84+2*k}:{85+2*k}], 0")
    stamp("start")
    if spin: a("s_memrealtime s[84:85]")
    a("s_load_dwordx16 s[4:19], s[0:1], 0\ns_load_dwordx8 s[20:27], s[0:1], 64")
    a("s_getpc_b64 s[82:83]")
    a(f"v_lshrrev_b32 v8, 6, v0\nv_and_b32 {LANE}, 63, v0\nv_lshlrev_b32 v9, 7, v0")
    a("v_readfirstlane_b32 s3, v8")
    a("s_cmp_ge_u32 s3, 2\ns_cbranch_scc1 L_nopf")
    a.count_vm = False; a.count_vm7 = False
    a("global_load_dword v255, v9, s[82:83]")
    a.count_vm = True; a.count_vm7 = True
    a("L_nopf:")
    a(f"s_lshr_b32 {sG}, s2, 6\ns_and_b32 {sIDX}, s2, 63")
    a(f"s_mov_b32 {sMSK}, 0xffff0000")
    a(f"v_lshlrev_b32 {VOFF}, 4, {LANE}")
    a(f"v_lshrrev_b32 v8, 3, {LANE}")
    a(f"v_and_b32 v9, 7, {LANE}")
    a(f"v_lshlrev_b32 v10, 5, {LANE}")
    a("v_lshlrev_b32 v11, 3, v8")
    a("v_lshlrev_b32 v12, 4, v8")
    a("v_lshlrev_b32 v13, 15, v8\nv_lshl_add_u32 v13, v9, 4, v13")
    a(f"s_and_b32 {sT}, {sIDX}, 3\ns_lshl_b32 {sT}, {sT}, 8\ns_lshl_b32 {sT2}, s3, 5\ns_add_u32 {sT}, {sT}, {sT2}")
    a(f"s_lshl_b32 s80, {sT}, 1")
    a(f"s_lshl_b32 {sT}, {sT}, 13\ns_lshr_b32 {sT2}, s2, 2\ns_lshl_b32 {sT2}, {sT2}, 7\ns_add_u32 {sT}, {sT}, {sT2}")
    a("s_and_b32 s81, s2, 15\ns_lshl_b32 s81, s81, 7")
    a("s_waitcnt lgkmcnt(0)")
    srd(sX, 4, 2048)
    srd(sWQ, 10, 8 << 20)
    a.vmem(f"buffer_load_dwordx4 {q4(S)}, v10, {sX}, 0 offen")
    a.vmem(f"buffer_load_dwordx4 {q4(S+4)}, v10, {sX}, 0 offen offset:16")
    a.vmem(f"buffer_load_dwordx2 {q2(S+8)}, v11, {sX}, s80 offen")
    txa = a.vmem(f"buffer_load_dwordx4 {q4(S+12)}, v12, {sX}, s81 offen")
    twq = []
    for i in range(4):
        twq.append(a.vmem(f"buffer_load_dwordx4 {q4(WT+4*i)}, v13, {sWQ}, {sT} offen {pol}"))
        if i < 3: a(f"s_add_u32 {sT}, {sT}, 8192")
    srd(sK, 6, 64 << 20)
    a(f"s_lshl_b32 {sKVB}, {sG}, 24")
    pos = 0
    while pos < 12:
        t = toks[pos]
        if t[0] == 's': pos += 1; continue
        n = 1
        while pos + n < 12 and toks[pos + n][0] == t[0] and int(toks[pos + n][1]) == int(t[1]) + n: n += 1
        src = sIDX if t[0] == 'g' else 's3'
        a(f"s_bfe_u32 {sT}, {src}, {(n<<16) | int(t[1])}\ns_lshl_b32 {sT}, {sT}, {12+pos}\ns_or_b32 {sKVB}, {sKVB}, {sT}")
        pos += n
    if oracle:
        a(f"s_getreg_b32 s80, hwreg(HW_REG_XCC_ID)")
        a(f"s_lshr_b32 {sKVB}, s2, 3\ns_lshl_b32 {sKVB}, {sKVB}, 21\ns_lshl_b32 {sT}, s3, 15\ns_or_b32 {sKVB}, {sKVB}, {sT}")
        a(f"s_bfe_u32 {sT}, s2, 0x10003\ns_lshl_b32 {sT}, {sT}, 13\ns_xor_b32 {sKVB}, {sKVB}, {sT}")
        a(f"s_bfe_u32 {sT}, s80, 0x20001\ns_lshl_b32 {sT}, {sT}, 12\ns_xor_b32 {sKVB}, {sKVB}, {sT}")
        a(f"s_bfe_u32 {sT}, s80, 0x10000\ns_lshl_b32 {sT}, {sT}, 14\ns_xor_b32 {sKVB}, {sKVB}, {sT}")
    a(f"v_and_b32 {KOFF}, 3, {LANE}\nv_lshlrev_b32 {KOFF}, 10, {KOFF}")
    a(f"v_bfe_u32 v10, {LANE}, 2, 1\nv_lshl_add_u32 {KOFF}, v10, 8, {KOFF}")
    a(f"v_bfe_u32 v10, {LANE}, 3, 1\nv_lshl_add_u32 {KOFF}, v10, 6, {KOFF}")
    a(f"v_lshrrev_b32 v10, 4, {LANE}\nv_lshl_add_u32 {KOFF}, v10, 4, {KOFF}")
    tk = {}
    sKS = "s83"
    def issue(p, depth):
        if p < 32:
            t, qd = divmod(p, 4)
            if qd == 0: a(f"s_xor_b32 {sKS}, {sKVB}, {stepoff(t) ^ ((oracle[0] << 12) if oracle else 0)}")
            ins = f"buffer_load_dwordx4 {q4(KV+4*p)}, {KOFF}, {sK}, {sKS} offen offset:{(qd>>1)*512 + (qd&1)*128} {polk}"
        elif p < 40:
            i = p - 32
            if i: a(f"s_add_u32 {sGUO}, {sGUO}, 7168")
            ins = f"buffer_load_dwordx4 {q4(WA+4*i)}, {GOFF}, {sGU}, {sGUO} offen {pol}"
        elif p < 72:
            i = p - 40; t, qd = divmod(i, 4)
            if qd == 0: a(f"s_xor_b32 {sKS}, {sKVB}, {stepoff(t) ^ ((((oracle[0] & 5) | (oracle[1] & 2)) << 12) if oracle else 0)}")
            ins = f"buffer_load_dwordx4 {q4(KV+4*i)}, {VOFF}, {sV}, {sKS} offen offset:{qd*1024} {polv}"
        elif p < 76:
            i = p - 72
            if i == 2: a(f"s_add_u32 {sWDO}, {sWDO}, 4096")
            ins = f"buffer_load_dwordx4 {q4(WT+16+4*i)}, v15, {sWD}, {sWDO} offen offset:{(i&1)*2048} {pol}"
        else:
            i = p - 76
            if i: a(f"s_add_u32 {sWOO}, {sWOO}, 16384")
            ins = f"buffer_load_dwordx4 {q4(WT+4*i)}, v14, {sWO}, {sWOO} offen {pol}"
        if 32 <= p < 40 and skip7:
            lab[0] += 1; n = lab[0]
            if p == 32:
                a(f"s_cmp_lg_u32 s3, 7\ns_cbranch_scc1 Lgu{n}\ns_waitcnt vmcnt(0)\nLgu{n}:")
            a(f"s_cmp_eq_u32 s3, 7\ns_cbranch_scc1 Lsk{n}")
            a.count_vm7 = False
        if depth: a.throttle(depth)
        tk[p] = a.vmem(ins)
        if 32 <= p < 40 and skip7:
            a(f"Lsk{n}:")
            a.count_vm7 = True
    a("s_barrier")
    for p in range(k_early): issue(p, 0)
    srd(sWS, 26, 256 << 20)
    srd(sDBG, 24, 256)
    srd(sV, 8, 64 << 20)
    srd(sWO, 12, 8 << 20)
    srd(sWD, 20, 7 << 20)
    srd(sOUT, 22, 2048)
    a("s_cmp_ge_u32 s2, 128\ns_cselect_b32 s48, s18, s16\ns_cselect_b32 s49, s19, s17")
    a(f"s_mov_b32 s50, {7<<20}\ns_mov_b32 s51, 0x20000")
    a(f"s_mul_i32 {sOWN}, s2, {STR}")
    a(f"s_and_b32 {sHH}, s2, 7\ns_lshl_b32 {sHH}, {sHH}, 2\ns_bfe_u32 {sT}, s2, 0x20003\ns_add_u32 {sHH}, {sHH}, {sT}")
    a(f"s_lshr_b32 {sCB}, s2, 5")
    a(f"s_mov_b32 {sPLO}, 0x05040100\ns_mov_b32 {sPHI}, 0x07060302\ns_mov_b32 {sL2E}, 0x3fb8aa3b\ns_mov_b32 {sSCL}, 0x3db504f3")
    a(f"s_mov_b32 {sRETRY}, 0")
    a(f"v_and_b32 v10, 1, {LANE}\nv_lshlrev_b32 v10, 2, v10\nv_lshrrev_b32 v11, 5, {LANE}\nv_lshl_add_u32 v10, v11, 1, v10")
    a(f"s_lshl_b32 {sT}, s2, 3")
    a.vmem(f"buffer_load_ushort {XF}, v10, {sX}, {sT} offen")
    a(f"v_mov_b32 v10, 0\nv_mov_b32 v11, 0\nds_write_b64 v10, v[10:11] offset:{L_CNT}\nds_write_b64 v10, v[10:11] offset:{L_CNT+8}")
    a(f"s_cmp_eq_u32 s3, 7\ns_cselect_b32 {sOOB}, 0x40000000, 0")
    a(f"v_mul_u32_u24 {GOFF}, {8*7168}, v8\nv_lshl_add_u32 {GOFF}, v9, 4, {GOFF}\nv_add_u32 {GOFF}, {sOOB}, {GOFF}")
    a(f"s_and_b32 {sGUO}, s2, 15\ns_mul_i32 {sGUO}, {sGUO}, {64*7168}\ns_bfe_u32 s80, s2, 0x30004\ns_mul_i32 s80, s80, 896\ns_add_u32 {sGUO}, {sGUO}, s80")
    a(f"s_lshl_b32 s80, s3, 7\ns_add_u32 {sGUO}, {sGUO}, s80")
    a(f"s_and_b32 s80, s3, 1\ns_lshl_b32 s80, s80, 6\ns_lshr_b32 s81, s3, 1\ns_add_u32 s80, s80, s81\ns_lshl_b32 s81, {sHH}, 7\ns_add_u32 s80, s80, s81")
    a(f"s_lshl_b32 s80, s80, 11\ns_lshl_b32 s81, {sCB}, 8\ns_add_u32 {sWOO}, s80, s81")
    a(f"s_mul_i32 s80, {sHH}, 112\ns_lshl_b32 s82, s3, 4\ns_add_u32 s80, s80, s82\ns_lshl_b32 s80, s80, 11\ns_add_u32 {sWDO}, s81, s80")

    a.wait_vm(txa)
    stamp("xarr")
    X = S + 16
    for i in range(8): unpack(X + 2 * i, X + 2 * i + 1, S + i)
    a(f"v_add_f32 v8, v{X}, v{X+1}\nv_add_f32 v9, v{X+2}, v{X+3}")
    for i in range(4, 16, 2): a(f"v_add_f32 v8, v8, v{X+i}\nv_add_f32 v9, v9, v{X+i+1}")
    a("v_add_f32 v8, v8, v9")
    allreduce(8, "v_add_f32", 9)
    a("v_mul_f32 v8, 0x3a800000, v8")
    for i in range(16): a(f"v_sub_f32 v{X+i}, v{X+i}, v8")
    a(f"v_mul_f32 v10, v{X}, v{X}\nv_mul_f32 v9, v{X+1}, v{X+1}")
    for i in range(2, 16, 2): a(f"v_fmac_f32 v10, v{X+i}, v{X+i}\nv_fmac_f32 v9, v{X+i+1}, v{X+i+1}")
    a("v_add_f32 v10, v10, v9")
    allreduce(10, "v_add_f32", 9)
    a("v_mul_f32 v10, 0x3a800000, v10")
    a("v_cvt_pk_bf16_f32 v9, v8, v10")
    unpack(8, 10, 9)
    a("v_add_f32 v10, 0x3727c5ac, v10\nv_cvt_pk_bf16_f32 v10, v10, v10\nv_lshlrev_b32 v10, 16, v10")
    a("v_sqrt_f32 v10, v10\nv_cvt_pk_bf16_f32 v10, v10, v10\nv_lshlrev_b32 v10, 16, v10\nv_rcp_f32 v10, v10")
    def normalize(lo, src):
        hi = lo + 1
        unpack(lo, hi, src)
        a(f"v_sub_f32 v{lo}, v{lo}, v8\nv_sub_f32 v{hi}, v{hi}, v8\nv_cvt_pk_bf16_f32 v9, v{lo}, v{hi}")
        unpack(lo, hi, 9)
        a(f"v_mul_f32 v{lo}, v{lo}, v10\nv_mul_f32 v{hi}, v{hi}, v10\nv_cvt_pk_bf16_f32 v9, v{lo}, v{hi}")
        unpack(lo, hi, 9)
    XQ = X
    for i in range(2): normalize(XQ + 2 * i, S + 8 + i)
    QA = WT + 16
    for i in range(4):
        a.wait_vm(twq[i])
        gemv(QA, WT, [i], XQ, 11, 9)
    stamp("wqarr")
    reduce8(QA)
    a(f"v_and_b32 v11, 7, {LANE}\nv_lshlrev_b32 v11, 5, v11\nv_lshrrev_b32 v9, 4, {LANE}\nv_lshl_add_u32 v13, v9, 3, v11")
    a(f"s_lshl_b32 {sT}, s3, 8\nv_add_u32 v11, {sT}, v13")
    a(f"ds_write_b64 v11, {q2(QA)} offset:{L_RED}")
    a("s_waitcnt lgkmcnt(0)\ns_barrier")
    stamp("B1")
    n7 = w7_begin()
    a("s_mov_b64 exec, 0xffff")
    for w in range(8): a(f"ds_read_b128 {q4(WT+4*w)}, {VOFF} offset:{L_RED+256*w}")
    a("s_mov_b64 exec, -1")
    for k in range(4): a(f"v_mov_b32 v{S+k}, -1")
    a("s_waitcnt lgkmcnt(0)")
    for st in (16, 8, 4):
        for k in range(st): a(f"v_add_f32 v{WT+k}, v{WT+k}, v{WT+st+k}")
    a(f"s_add_u32 {sT}, {sOWN}, 4096\ns_mov_b64 exec, 0xffff")
    a(f"buffer_store_dwordx4 {q4(WT)}, {VOFF}, {sWS}, {sT} offen offset:{O_QP-4096} sc1")
    a("s_mov_b64 exec, -1")
    for i in range(4):
        a(f"buffer_store_dwordx4 {q4(S)}, {VOFF}, {sWS}, {sOWN} offen offset:{1024*i} sc1")
    a(f"buffer_store_dwordx4 {q4(S)}, {VOFF}, {sWS}, {sT} offen sc1")
    a("s_mov_b64 exec, 1\nv_mov_b32 v11, 1\ns_waitcnt vmcnt(0)")
    a(f"buffer_store_byte v11, off, {sDBG}, s2 sc1")
    a("s_mov_b64 exec, -1")
    stamp("qpub")
    w7_end(n7)
    for i in range(4): normalize(XA + 2 * i, S + 12 + i)

    at = {}
    def sched(p, f): at.setdefault(p, []).append(f)
    st7 = {}
    pl = f"buffer_load_dword v12, v11, {sDBG}, 0 offen sc1"
    def c_poll_issue():
        n = w7_begin()
        a(f"v_lshlrev_b32 v11, 2, {LANE}")
        a(pl); st7["poll"] = a.vm7
        w7_end(n)
    def c_poll_check():
        n = w7_begin()
        a("s_mov_b32 s80, 0x01010101")
        stamp("prepoll")
        a.wait_vm7(st7["poll"])
        poll([pl], lambda: a("v_cmp_ne_u32 vcc, s80, v12"), slp)
        stamp("pollok")
        lds_signal(L_CNT + 12, 8)
        w7_end(n)
    def c_qg_issue():
        a(f"v_bfe_u32 v8, {LANE}, 4, 1\nv_lshrrev_b32 v9, 5, {LANE}\nv_lshl_add_u32 v8, v8, 2, v9\nv_mul_u32_u24 v8, {STR}, v8")
        a(f"v_and_b32 v9, 15, {LANE}\nv_lshl_add_u32 v10, v9, 4, v8")
        a(f"s_lshl_b32 {sQG}, {sG}, 3\ns_add_u32 {sQG}, {sQG}, s3\ns_mul_i32 {sQG}, {sQG}, {8*STR}\ns_add_u32 {sQG}, {sQG}, {O_QP}")
        stamp("preF")
        lds_wait(L_CNT + 12, 1, 8)
        stamp("Fok")
        a.vmem(f"buffer_load_dwordx4 {q4(S)}, v10, {sWS}, {sQG} offen sc1")
        a(f"s_add_u32 {sQG}, {sQG}, {2*STR}")
        tk["q"] = a.vmem(f"buffer_load_dwordx4 {q4(S+4)}, v10, {sWS}, {sQG} offen sc1")
    def c_qg_use():
        a(f"v_and_b32 v9, 31, {LANE}\nv_lshlrev_b32 v9, 3, v9\ns_mul_i32 s80, s3, {QSTR}\nv_add_u32 v10, s80, v9")
        a.wait_vm(tk["q"])
        stamp("qarr")
        for k in range(4): a(f"v_add_f32 v{S+k}, v{S+k}, v{S+4+k}")
        for k in range(4): a(f"v_mov_b32 v{S+4+k}, v{S+k}")
        for k in range(4): a(f"v_permlane32_swap_b32 v{S+k}, v{S+4+k}")
        for k in range(4): a(f"v_add_f32 v{S+k}, v{S+k}, v{S+4+k}")
        a(f"v_cvt_pk_bf16_f32 v{S}, v{S}, v{S+1}\nv_cvt_pk_bf16_f32 v{S+1}, v{S+2}, v{S+3}")
        a(f"ds_write_b64 v10, {q2(S)} offset:{L_Q}")
        lds_signal(L_CNT, 8)
    def c_readq():
        a(f"v_and_b32 v10, 7, {LANE}\nv_mul_u32_u24 v10, {QSTR}, v10\nv_bfe_u32 v11, {LANE}, 3, 1\nv_lshl_add_u32 v10, v11, 6, v10\nv_lshrrev_b32 v11, 4, {LANE}\nv_lshl_add_u32 v10, v11, 4, v10")
        stamp("preQ")
        lds_wait(L_CNT, 8, 8)
        a(f"ds_read_b128 {q4(Q)}, v10 offset:{L_Q}\nds_read_b128 {q4(Q+4)}, v10 offset:{L_Q+128}")
        a("s_waitcnt lgkmcnt(0)")
        stamp("Qrdy")
    ACC = WT
    def c_qk(t):
        def f():
            b = KV + 16 * t; c = ACC; s = S + 4 * t
            a.wait_vm(tk[4 * t + 3])
            a(f"v_mfma_f32_16x16x32_bf16 {q4(c)}, {q4(b)}, {q4(Q)}, 0")
            a(f"v_mfma_f32_16x16x32_bf16 {q4(c+4)}, {q4(b+8)}, {q4(Q)}, 0")
            a(f"v_mfma_f32_16x16x32_bf16 {q4(c)}, {q4(b+4)}, {q4(Q+4)}, {q4(c)}")
            a(f"v_mfma_f32_16x16x32_bf16 {q4(c+4)}, {q4(b+12)}, {q4(Q+4)}, {q4(c+4)}")
            for i in range(4): a(f"v_permlane32_swap_b32 v{c+i}, v{c+4+i}")
            for i in range(4): a(f"v_add_f32_dpp v{c+i}, v{c+4+i}, v{c+i} row_ror:8 {DPP}")
            for i in (0, 2): a(f"v_cvt_pk_bf16_f32 v{c+4+i}, v{c+i}, v{c+i+1}")
            for i in (0, 2): unpack(c + i, c + i + 1, c + 4 + i)
            for i in range(4): a(f"v_mul_f32 v{c+i}, {sSCL}, v{c+i}")
            for i in (0, 2): a(f"v_cvt_pk_bf16_f32 v{c+4+i}, v{c+i}, v{c+i+1}")
            for i in (0, 2): unpack(s + i, s + i + 1, c + 4 + i)
            if t == 0: a(f"v_max_f32 {MW}, v{s}, v{s+1}")
            else: a(f"v_max3_f32 {MW}, {MW}, v{s}, v{s+1}")
            a(f"v_max3_f32 {MW}, {MW}, v{s+2}, v{s+3}")
        return f
    mw = int(MW[1:])
    def c_exp(part):
        def f():
            if part == 0:
                allreduce(mw, "v_max_f32", 9, steps=())
                a(f"v_mul_f32 v12, {sL2E}, {MW}")
            for i in range(8 * part, 8 * part + 8): a(f"v_fma_f32 v{S+i}, v{S+i}, {sL2E}, -v12")
            for i in range(8 * part, 8 * part + 8): a(f"v_exp_f32 v{S+i}, v{S+i}")
            for i in range(8 * part, 8 * part + 8, 2):
                if i == 0: a(f"v_add_f32 v11, v{S}, v{S+1}")
                else: a(f"v_add_f32 v9, v{S+i}, v{S+i+1}\nv_add_f32 v11, v11, v9")
                a(f"v_cvt_pk_bf16_f32 v{S+i//2}, v{S+i}, v{S+i+1}")
            if part == 3:
                allreduce(11, "v_add_f32", 9, steps=())
                a(f"v_mov_b32 v10, {MW}")
                a(f"v_lshlrev_b32 v8, 3, {LANE}\ns_lshl_b32 s80, s3, 6\nv_add_u32 v9, s80, v8")
                a(f"s_mov_b64 exec, 0xff\nds_write_b64 v9, v[10:11] offset:{L_MLW}\ns_mov_b64 exec, -1")
                lds_signal(L_CNT + 4, 8)
                stamp("Prdy")
        return f
    def c_mlpub():
        n = w7_begin()
        lds_wait(L_CNT + 4, 8, 8)
        a(f"v_lshlrev_b32 v8, 3, {LANE}")
        a(f"ds_read_b64 v[10:11], v8 offset:{L_MLW}\ns_waitcnt lgkmcnt(0)")
        a(f"v_mov_b32 v{WT+8}, v10")
        allreduce(WT + 8, "v_max_f32", 9, steps=(8,))
        a(f"v_sub_f32 v10, v10, v{WT+8}\nv_mul_f32 v10, {sL2E}, v10\nv_exp_f32 v10, v10\nv_mul_f32 v{WT+9}, v10, v11")
        allreduce(WT + 9, "v_add_f32", 9, steps=(8,))
        a(f"v_min_u32 v{WT+8}, -2, v{WT+8}\nv_min_u32 v{WT+9}, -2, v{WT+9}")
        a(f"s_add_u32 {sT}, {sOWN}, {O_ML}\ns_mov_b64 exec, 0xff")
        a(f"buffer_store_dwordx2 {q2(WT+8)}, v8, {sWS}, {sT} offen sc1")
        a("s_mov_b64 exec, -1")
        stamp("mlpub")
        w7_end(n)
    GA = WT
    def c_gu(part):
        def f():
            if part < 4:
                a.wait_vm(tk[32 + 2 * part + 1])
                gemv(GA, WA, [2 * part, 2 * part + 1], XA, 8, 9)
            else:
                reduce8(GA)
                a(f"v_min_u32 v{GA}, -2, v{GA}\nv_min_u32 v{GA+1}, -2, v{GA+1}")
                a(f"s_lshl_b32 {sT}, s3, 8\ns_add_u32 {sT}, {sT}, {sOWN}\nv_add_u32 v8, {sOOB}, v13")
                a("s_mov_b32 exec_lo, 0x00ff00ff\ns_mov_b32 exec_hi, 0x00ff00ff")
                a.vmem(f"buffer_store_dwordx2 {q2(GA)}, v8, {sWS}, {sT} offen offset:{O_GU} sc1")
                a("s_mov_b64 exec, -1")
                stamp("gupub")
        return f
    G = KV
    gl = [f"buffer_load_dwordx2 {q2(G+8)}, v12, {sWS}, {sML} offen sc1",
          f"buffer_load_dwordx4 {q4(G)}, v13, {sWS}, {sH0} offen offset:{O_GU} sc1",
          f"buffer_load_dwordx4 {q4(G+4)}, v13, {sWS}, {sH1} offen offset:{O_GU} sc1"]
    def c_g_issue():
        a(f"v_mul_u32_u24 v12, {STR}, {LANE}")
        a(f"s_mul_i32 {sML}, {sG}, {64*STR}\ns_lshl_b32 {sT}, s3, 3\ns_add_u32 {sML}, {sML}, {sT}\ns_add_u32 {sML}, {sML}, {O_ML}")
        a(f"v_lshrrev_b32 v8, 5, {LANE}\nv_mul_u32_u24 v8, {STR}, v8\nv_and_b32 v9, 31, {LANE}\nv_lshl_add_u32 v13, v9, 4, v8")
        a("v_cmp_lt_u32 vcc, 27, v9\nv_mov_b32 v8, 0x40000000\nv_cndmask_b32 v13, v13, v8, vcc")
        a(f"s_lshr_b32 {sH0}, {sHH}, 2\ns_lshl_b32 {sH0}, {sH0}, 3\ns_add_u32 {sH0}, {sH0}, s3\ns_mul_i32 {sH0}, {sH0}, {2*STR}")
        a(f"s_and_b32 {sT}, {sHH}, 3\ns_mul_i32 {sT}, {sT}, 448\ns_add_u32 {sH0}, {sH0}, {sT}\ns_add_u32 {sH1}, {sH0}, {128*STR}")
        for l in gl: tk["g"] = a.vmem(l)
    def c_g_use():
        stamp("preg")
        a.wait_vm(tk["g"])
        poll(gl, chk_sent(range(G, G + 10), 8), slp)
        stamp("gok")
        a(f"v_mov_b32 v10, v{G+8}")
        allreduce(10, "v_max_f32", 9)
        a(f"v_sub_f32 v8, v{G+8}, v10\nv_mul_f32 v8, {sL2E}, v8\nv_exp_f32 v8, v8\nv_mul_f32 v11, v8, v{G+9}")
        allreduce(11, "v_add_f32", 9)
        a("v_rcp_f32 v11, v11")
        a(f"s_lshl_b32 s80, s3, 3\nv_mov_b32 v8, s80")
        a(f"ds_write_b64 v8, v[10:11] offset:{L_MLG}")
        for k in range(4): a(f"v_permlane32_swap_b32 v{G+k}, v{G+4+k}")
        for k in range(4): a(f"v_add_f32 v{G+k}, v{G+k}, v{G+4+k}")
        a(f"s_lshl_b32 s80, s3, 10\nv_add_u32 v8, s80, {VOFF}")
        a(f"ds_write_b128 v8, {q4(G)} offset:{L_HRED}")
        lds_signal(L_CNT + 8, 8)
    AO = Q
    def c_h():
        a(f"v_and_b32 v12, 7, {LANE}\nv_lshlrev_b32 v13, 3, v12")
        a(f"v_lshlrev_b32 v12, 10, v12\nv_bfe_u32 v9, {LANE}, 3, 1\nv_lshl_add_u32 v12, v9, 9, v12\nv_lshrrev_b32 v9, 4, {LANE}\nv_lshl_add_u32 v12, v9, 4, v12")
        a(f"s_lshl_b32 s80, s3, 6\nv_add_u32 v12, s80, v12")
        lds_wait(L_CNT + 8, 8, 8)
        a(f"ds_read_b64 v[10:11], v13 offset:{L_MLG}\nds_read_b128 {q4(G)}, v12 offset:{L_HRED}\ns_waitcnt lgkmcnt(0)")
        a(f"v_sub_f32 v10, {MW}, v10\nv_mul_f32 v10, {sL2E}, v10\nv_exp_f32 v10, v10\nv_mul_f32 {FS}, v10, v11")
        a(f"v_mov_b32_dpp {FS}, {FS} row_ror:8 row_mask:0xf bank_mask:0xc")
        for m in ("quad_perm:[1,0,3,2]", "quad_perm:[2,3,0,1]", "row_half_mirror"):
            for k in range(4): a(f"v_add_f32_dpp v{G+k}, v{G+k}, v{G+k} {m} {DPP}")
        for i in (0, 2): a(f"v_cvt_pk_bf16_f32 v{G+4+i}, v{G+i}, v{G+i+1}")
        for i in (0, 2): unpack(G + i, G + i + 1, G + 4 + i)
        for k in range(4): a(f"v_mov_b32_dpp v{G+4+k}, v{G+k} row_ror:8 {DPP}")
    def c_h2():
        a("s_mov_b32 s80, 0x3d372713\ns_mov_b32 s81, 0xc0135761")
        for k in range(4): a(f"v_mul_f32 v{G+8+k}, v{G+k}, v{G+k}")
        for k in range(4): a(f"v_fma_f32 v{G+8+k}, v{G+8+k}, s80, 1.0")
        for k in range(4): a(f"v_mul_f32 v{G+8+k}, v{G+8+k}, v{G+k}")
        for k in range(4): a(f"v_mul_f32 v{G+8+k}, s81, v{G+8+k}")
        for k in range(4): a(f"v_exp_f32 v{G+8+k}, v{G+8+k}")
        for k in range(4): a(f"v_add_f32 v{G+8+k}, 1.0, v{G+8+k}")
        for k in range(4): a(f"v_rcp_f32 v{G+8+k}, v{G+8+k}")
        for k in range(4): a(f"v_mul_f32 v{G+k}, v{G+k}, v{G+8+k}")
        for i in (0, 2): a(f"v_cvt_pk_bf16_f32 v{G+8+i}, v{G+i}, v{G+i+1}")
        for i in (0, 2): unpack(G + i, G + i + 1, G + 8 + i)
        for k in range(4): a(f"v_mul_f32 v{G+k}, v{G+k}, v{G+4+k}")
        for k in range(4): a(f"v_mov_b32 v{AO+k}, 0")
        a("s_mov_b32 exec_lo, 0x00020002\ns_mov_b32 exec_hi, 0x00020002")
        a(f"v_cvt_pk_bf16_f32 v{AO+2}, v{G}, v{G+1}\nv_cvt_pk_bf16_f32 v{AO+3}, v{G+2}, v{G+3}")
        a("s_mov_b64 exec, -1")
        stamp("hrdy")
    VT = S + 16
    def transp(dst, b, e, nq=4):
        sel = sPHI if e & 1 else sPLO
        for t in range(nq):
            a(f"v_perm_b32 v{dst+t}, v{b+8*t+4+(e>>1)}, v{b+8*t+(e>>1)}, {sel}")
    def c_pv(tau):
        def f():
            b = KV + 32 * tau
            a.wait_vm(tk[40 + 8 * tau + 7])
            if tau == 3: stamp("Vend")
            transp(VT, b, 0)
            for e in range(8):
                if e < 7: transp(VT + 4 * ((e + 1) & 1), b, e + 1)
                c = q4(WA + 4 * e) if tau else "0"
                a(f"v_mfma_f32_16x16x32_bf16 {q4(WA+4*e)}, {q4(VT+4*(e&1))}, {q4(S+4*tau)}, {c}")
        return f
    SEL = Q + 4
    def c_addr1():
        a(f"v_lshrrev_b32 v8, 5, {LANE}\nv_lshlrev_b32 v8, 16, v8\nv_bfe_u32 v9, {LANE}, 4, 1\nv_lshl_add_u32 v8, v9, 13, v8")
        a(f"v_and_b32 v9, 15, {LANE}\nv_lshl_add_u32 v14, v9, 4, v8")
        a(f"v_lshrrev_b32 v8, 4, {LANE}\nv_lshlrev_b32 v8, 13, v8\nv_lshl_add_u32 v15, v9, 4, v8\nv_add_u32 v15, {sOOB}, v15")
        a(f"v_and_b32 v8, 7, {LANE}\nv_mul_u32_u24 v8, {OWH}, v8\nv_lshrrev_b32 v9, 3, {LANE}\nv_lshl_add_u32 v8, v9, 4, v8\ns_mul_i32 s80, s3, {OWW}\nv_add_u32 v16, s80, v8")
        a(f"s_mul_i32 s80, s3, {OWH}\nv_lshlrev_b32 v17, 3, {LANE}\nv_add_u32 v17, s80, v17")
        a(f"v_lshlrev_b32 v18, 2, {LANE}")
        a(f"s_lshl_b32 {sOPS}, s3, 8\ns_add_u32 {sOPS}, {sOPS}, {sOWN}")
        a(f"v_lshrrev_b32 v8, 4, {LANE}\nv_mul_u32_u24 v8, {STR}, v8\nv_and_b32 v9, 15, {LANE}\nv_lshl_add_u32 v19, v9, 4, v8")
        a(f"s_lshr_b32 {sOG0}, {sHH}, 3\ns_lshl_b32 {sOG0}, {sOG0}, 3\ns_add_u32 {sOG0}, {sOG0}, s3\ns_mul_i32 {sOG0}, {sOG0}, {8*STR}\ns_and_b32 s80, {sHH}, 7\ns_lshl_b32 s80, s80, 8\ns_add_u32 {sOG0}, {sOG0}, s80")
        a(f"s_add_u32 {sOG1}, {sOG0}, {4*STR}")
    def c_addr2():
        a(f"v_and_b32 v8, 1, {LANE}\nv_lshlrev_b32 v8, 4, v8\nv_mov_b32 v9, 0x3f80\nv_lshlrev_b32 v9, v8, v9\nv_bfe_u32 v8, {LANE}, 1, 2")
        for k in range(4):
            a(f"v_cmp_eq_u32 vcc, {k}, v8\nv_cndmask_b32 v{SEL+k}, 0, v9, vcc")
        a(f"v_and_b32 v8, 15, {LANE}\nv_lshlrev_b32 v20, 5, v8\nv_bfe_u32 v9, {LANE}, 4, 1\nv_lshl_add_u32 v20, v9, 4, v20\ns_lshl_b32 s80, s3, 9\nv_add_u32 v20, s80, v20")
        a(f"v_and_b32 v9, 7, {LANE}\nv_lshlrev_b32 v21, 9, v9\nv_lshrrev_b32 v9, 4, {LANE}\nv_lshl_add_u32 v21, v9, 4, v21\ns_lshl_b32 s80, s3, 6\nv_add_u32 v21, s80, v21")
        a(f"v_lshlrev_b32 v22, 6, v8\ns_lshl_b32 s80, s3, 10\nv_add_u32 v22, s80, v22")
        a(f"v_lshrrev_b32 v8, 1, {LANE}\nv_mul_u32_u24 v8, {STR}, v8\nv_and_b32 v9, 1, {LANE}\nv_lshl_add_u32 v23, v9, 4, v8")
        a(f"s_mul_i32 {sSDG}, {sCB}, {32*STR}\ns_and_b32 s80, s2, 31\ns_lshl_b32 s80, s80, 5\ns_add_u32 {sSDG}, {sSDG}, s80")
        a(f"v_lshlrev_b32 {XF}, 16, {XF}")
    def c_touch():
        n = w7_begin()
        a("s_mov_b64 exec, 1")
        a(f"buffer_load_dword v{WA}, off, {sV}, {sKVB}")
        a(f"buffer_load_dword v{WA}, off, {sWO}, {sWOO}")
        a(f"buffer_load_dword v{WA}, off, {sWD}, {sWDO}")
        a(f"buffer_load_dword v{WA}, off, {sGU}, {sGUO}")
        a(f"buffer_load_dword v{WA}, off, {sOUT}, 0")
        a("s_mov_b64 exec, -1")
        w7_end(n)
    if touch: sched(k_early + 1, c_touch)
    sched(kp, c_poll_issue)
    sched(kp + N, c_poll_check)
    sched(kg, c_qg_issue)
    assert kg < 32 and kg > kp + N
    sched(min(kg + N + 1, 32), c_qg_use)
    sched(kq, c_readq)
    p = kq
    for t in range(8):
        p = max(p + 1, 4 * t + 3 + N + 1)
        assert p <= 40 + 4 * t
        sched(p, c_qk(t))
    for part in range(4):
        p += 1; sched(p, c_exp(part))
    pe = p
    sched(pe + 3, c_mlpub)
    for part in range(5):
        p = max(p + 1, 32 + 2 * part + 1 + N + 1 if part < 4 else 0); sched(p, c_gu(part))
    sched(p + 1, c_addr1); sched(p + 2, c_addr2)
    p += 2
    for tau in range(3):
        p = max(p + 1, 40 + 8 * tau + 7 + N + 1)
        sched(p, c_pv(tau))
        if tau == 0: assert vg > p
    sched(vg, c_g_issue)
    for p in range(k_early, 80):
        for f in at.pop(p, []): f()
        issue(p, N if p < 72 else NW)
        stamp(f"p{p}")
    assert not at, at.keys()
    c_g_use(); c_h(); c_h2()
    c_pv(3)()
    stamp("PVend")
    for e in range(4):
        for i in range(4):
            a(f"v_mov_b32_dpp v{WA+4*e+i}, v{WA+4*(e+4)+i} row_ror:8 row_mask:0xf bank_mask:0xc")
        for i in range(4):
            a(f"v_mul_f32 v{WA+4*e+i}, {FS}, v{WA+4*e+i}")
        a(f"ds_write_b128 v16, {q4(WA+4*e)} offset:{L_OW+128*e}")
    a("s_waitcnt lgkmcnt(0)\ns_barrier")
    stamp("B5")
    R = S
    for w in range(8): a(f"ds_read_b64 {q2(R+2*w)}, v17 offset:{L_OW+OWW*w}")
    a("s_waitcnt lgkmcnt(0)")
    for st in (8, 4, 2):
        for k in range(st): a(f"v_add_f32 v{R+k}, v{R+k}, v{R+st+k}")
    a(f"v_cvt_pk_bf16_f32 v{R}, v{R}, v{R+1}\nv_min_u32 v{R}, -2, v{R}")
    for k in (1, 2, 3): a(f"v_mov_b32_dpp v{R+k}, v{R} quad_perm:[{k},{k},{k},{k}] {DPP}")
    a("s_mov_b32 exec_lo, 0x11111111\ns_mov_b32 exec_hi, 0x11111111")
    a.vmem(f"buffer_store_dwordx4 {q4(R)}, v18, {sWS}, {sOPS} offen sc1")
    a("s_mov_b64 exec, -1")
    stamp("opub")
    GO = S + 8
    ol = [f"buffer_load_dwordx4 {q4(GO)}, v19, {sWS}, {sOG0} offen sc1",
          f"buffer_load_dwordx4 {q4(GO+4)}, v19, {sWS}, {sOG1} offen sc1"]
    for l in ol: to = a.vmem(l)
    BW = KV
    a.wait_vm(tk[79])
    stamp("Wend")
    for e in range(8): transp(BW + 4 * e, WT, e)
    a.wait_vm(to)
    poll(ol, chk_sent(range(GO, GO + 8), 8), slp_tail)
    stamp("hop1")
    a(f"v_mfma_f32_16x16x32_bf16 {q4(R)}, {q4(SEL)}, {q4(GO)}, 0")
    a(f"v_mfma_f32_16x16x32_bf16 {q4(R)}, {q4(SEL)}, {q4(GO+4)}, {q4(R)}")
    a(f"ds_write_b128 v20, {q4(R)} offset:{L_ORED}")
    a("s_waitcnt lgkmcnt(0)\ns_barrier")
    stamp("B6")
    a(f"ds_read_b128 {q4(R)}, v21 offset:{L_ORED}\ns_waitcnt lgkmcnt(0)")
    for m in ("quad_perm:[1,0,3,2]", "quad_perm:[2,3,0,1]", "row_half_mirror"):
        for k in range(4): a(f"v_add_f32_dpp v{R+k}, v{R+k}, v{R+k} {m} {DPP}")
    a("s_mov_b32 exec_lo, 0x00010001\ns_mov_b32 exec_hi, 0x00010001")
    a(f"v_cvt_pk_bf16_f32 v{AO}, v{R}, v{R+1}\nv_cvt_pk_bf16_f32 v{AO+1}, v{R+2}, v{R+3}")
    a("s_mov_b64 exec, -1\ns_nop 1")
    for e in range(8): a(f"v_mfma_f32_16x16x32_bf16 {q4(WA+4*e)}, {q4(AO)}, {q4(BW+4*e)}, 0")
    a("s_mov_b64 exec, 0xffff")
    for e in range(8): a(f"ds_write_b64 v22, {q2(WA+4*e)} offset:{L_SW+8*e}")
    a("s_mov_b64 exec, -1")
    a("s_waitcnt lgkmcnt(0)\ns_barrier")
    stamp("B7")
    a("s_cmp_lg_u32 s3, 0\ns_cbranch_scc1 " + ("L_fin" if diag else "L_end"))
    for w in range(8): a(f"ds_read_b128 {q4(R+4*w)}, {VOFF} offset:{L_SW+1024*w}")
    a("s_waitcnt lgkmcnt(0)")
    for st in (16, 8, 4):
        for k in range(st): a(f"v_add_f32 v{R+k}, v{R+k}, v{R+st+k}")
    for k in range(4): a(f"v_min_u32 v{R+k}, -2, v{R+k}")
    a.vmem(f"buffer_store_dwordx4 {q4(R)}, {VOFF}, {sWS}, {sOWN} offen offset:{O_SD} sc1")
    stamp("spub")
    F = S + 8
    fl = [f"buffer_load_dwordx4 {q4(F)}, v23, {sWS}, {sSDG} offen offset:{O_SD} sc1"]
    tf = a.vmem(fl[0])
    a(f"v_and_b32 v10, 1, {LANE}\nv_lshlrev_b32 v10, 2, v10\nv_lshrrev_b32 v9, 5, {LANE}\nv_lshl_add_u32 v10, v9, 1, v10\ns_lshl_b32 s80, s2, 3")
    a.wait_vm(tf)
    poll(fl, chk_sent(range(F, F + 4), 8), slp_tail)
    stamp("hop2")
    a(f"v_permlane32_swap_b32 v{F}, v{F+2}\nv_permlane32_swap_b32 v{F+1}, v{F+3}")
    a(f"v_add_f32 v{F}, v{F}, v{F+2}\nv_add_f32 v{F+1}, v{F+1}, v{F+3}")
    a(f"v_permlane16_swap_b32 v{F}, v{F+1}\nv_add_f32 v{F}, v{F}, v{F+1}")
    for s in (2, 4, 8): a(f"v_add_f32_dpp v{F}, v{F}, v{F} row_ror:{s} {DPP}")
    a(f"v_mov_b32 v{F+1}, v{F}\nv_permlane16_swap_b32 v{F}, v{F+1}")
    a(f"v_cvt_pk_bf16_f32 v8, v{F}, v{F+1}")
    unpack(F, F + 1, 8)
    a(f"v_mul_f32 v8, {sL2E}, v{F+1}\nv_exp_f32 v8, -v8\nv_add_f32 v8, 1.0, v8\nv_rcp_f32 v8, v8\nv_mul_f32 v8, v8, v{F+1}")
    a(f"v_cvt_pk_bf16_f32 v8, v8, v8\nv_lshlrev_b32 v8, 16, v8\nv_mul_f32 v8, v8, v{F}")
    a(f"v_cvt_pk_bf16_f32 v8, v8, v8\nv_lshlrev_b32 v8, 16, v8\nv_add_f32 v8, v8, {XF}\nv_cvt_pk_bf16_f32 v8, v8, v8")
    a("s_mov_b32 exec_lo, 3\ns_mov_b32 exec_hi, 3")
    a.vmem(f"buffer_store_short v8, v10, {sOUT}, s80 offen")
    if diag:
        stamp("fin")
        a("s_mov_b64 exec, -1\ns_waitcnt vmcnt(0)")
        stamp("end")
        a("L_fin:")
        a("s_waitcnt lgkmcnt(0)")
        for k in range(16): a(f"v_mov_b32 v{S+k}, s{84+k}")
        a(f"s_getreg_b32 s80, hwreg(HW_REG_XCC_ID)\nv_mov_b32 v{S+16}, s80\nv_mov_b32 v{S+17}, {sRETRY}")
        a(f"s_lshl_b32 s80, s2, 3\ns_add_u32 s80, s80, s3\ns_lshl_b32 s80, s80, 7\ns_add_u32 s80, s80, {STAMP_OFF}")
        a("s_mov_b64 exec, 1")
        for k in range(4): a(f"buffer_store_dwordx4 {q4(S+4*k)}, off, {sWS}, s80 offset:{16*k}")
        a(f"buffer_store_dwordx2 {q2(S+16)}, off, {sWS}, s80 offset:64")
    if spin:
        if spinx is not None:
            a(f"s_getreg_b32 s80, hwreg(HW_REG_XCC_ID)\ns_and_b32 s80, s80, 7\ns_cmp_lg_u32 s80, {spinx}\ns_cbranch_scc1 L_end")
        a(f"L_spin:\ns_sleep 2\ns_memrealtime s[86:87]\ns_waitcnt lgkmcnt(0)\ns_sub_u32 s86, s86, s84\ns_cmp_lt_u32 s86, {spin*100}\ns_cbranch_scc1 L_spin")
    a("L_end:\ns_endpgm")
    body = a.text()
    K = NAME + "_kernel"
    L = lds if lds else L_END
    out = HEADER + f"; @launch grid=(256,1,1) block=(512,1,1) lds={L}\n"
    out += f'.amdgcn_target "amdgcn-amd-amdhsa--gfx950"\n.text\n.globl {K}\n.p2align 8\n.type {K},@function\n{K}:\n'
    out += body
    out += "    .fill 2048, 4, 0xBF810000\n"
    out += f""".section .rodata,"a"
.p2align 6
.amdhsa_kernel {K}
  .amdhsa_next_free_vgpr 256
  .amdhsa_next_free_sgpr 102
  .amdhsa_accum_offset 256
  .amdhsa_group_segment_fixed_size 0
  .amdhsa_kernarg_size 96
  .amdhsa_user_sgpr_count 2
  .amdhsa_user_sgpr_kernarg_segment_ptr 1
  .amdhsa_system_sgpr_workgroup_id_x 1
.end_amdhsa_kernel
"""
    return out

if __name__ == "__main__":
    dst = sys.argv[1] if len(sys.argv) > 1 else f"cdna_kernels/{NAME}.s"
    kw = eval("dict(" + (sys.argv[2] if len(sys.argv) > 2 else "") + ")")
    open(dst, "w").write(gen(**kw))
```

```python
import sys
sys.path.insert(0, "gen")
from asmlib import Asm

NAME = "recurrent_scan__gqa_block_cached__glu_gated_geglu__decode"
HEADER = open("cdna_kernels/" + NAME + ".s.ref").read().split("; Override launch geometry")[0]

STR = 5376
O_OP, O_SD, O_GU, O_ML, O_QP = 0, 2048, 3072, 4864, 5120
STAMP_OFF = 128 << 20
FLG = 2 << 20
EPO = 3 << 20
L_RED = 0
L_Q = 2048
QSTR = 272
L_MLW = 4352
L_MLG = 4864
L_CNT = 4992
L_HRED = 5120
L_OW = 13312
OWH = 528; OWW = 8 * 528
L_ORED = L_OW + 8 * OWW
L_SW = L_ORED + 4096
L_GU = L_SW + 8192
L_END = L_GU + 2048

def gen(N=5, lay="g3^s0 g5^s2 g4^s1 w0 w1 w2 s0 s1 s2 g0 g1 g2 g6 g7", early=4, kp=52, kg=24, kq=34, vg=68, NR=12, relax=8, diag=False,
        pol="nt", lds=None, NW=12, stamps="start qpub Qrdy mlpub Prdy PVend hop1 end", spin=0, slp=8, slp_tail=4,
        touch=True, oracle=None, spinx=None, exp='', wbar=True, cw=0, fstr=4):
    a = Asm()
    polk = polv = pol
    def contrib(pos):
        r = 1 << (12 + pos)
        if pos == 7: r |= 1 << 14
        if pos == 8: r |= 1 << 12
        if pos == 9: r |= 1 << 13
        return r
    con = {}
    assert len(lay.split()) == 14 and lay.split()[-2:] == ["g6", "g7"]
    for pos, t in enumerate(lay.split()):
        for b in t.split("^"): con[b] = con.get(b, 0) ^ contrib(pos)
    assert len(con) == 14
    basis = []
    for v in con.values():
        for b in basis: v = min(v, v ^ b)
        assert v, "layout not invertible"
        basis.append(v)
    def stepoff(s):
        r = 0
        for t, cval in con.items():
            if t[0] == 's' and (s >> int(t[1])) & 1: r ^= cval
        return r
    LANE, KOFF, VOFF, MW, XF = "v1", "v2", "v3", "v4", "v5"
    GOFF, FS = "v6", "v7"
    XA = 16
    Q = 24
    WT = 32
    WA = 64
    S = 96
    KV = 128
    def q4(b): return f"v[{b}:{b+3}]"
    def q2(b): return f"v[{b}:{b+1}]"
    sX, sK, sV, sWQ, sWO, sGU, sWD, sOUT, sDBG, sWS = (f"s[{28+4*i}:{31+4*i}]" for i in range(10))
    sKVB, sT, sG, sIDX, sHH, sCB, sPLO, sPHI, sMSK, sL2E, sSCL, sOWN = (f"s{68+i}" for i in range(12))
    sT2, sRETRY = "s100", "s101"
    sGUO, sOOB, sWOO, sWDO, sOPS, sOG0, sOG1, sSDG, sML, sH0, sH1, sQG = (f"s{4+i}" for i in range(12))
    sTAG = "s60"
    stl = stamps.split(); assert len(stl) == 8
    def stamp(name):
        if diag and name in stl:
            k = stl.index(name)
            a(f"s_memrealtime s[{84+2*k}:{85+2*k}]")
    def srd(dst, ptr, size):
        d = int(dst[2:dst.index(":")])
        a(f"s_mov_b32 s{d}, s{ptr}\ns_mov_b32 s{d+1}, s{ptr+1}\ns_mov_b32 s{d+2}, {size}\ns_mov_b32 s{d+3}, 0x20000")
    DPP = "row_mask:0xf bank_mask:0xf"
    def allreduce(v, op, tmp, steps=(1, 2, 4, 8), cross=True):
        for s in steps:
            a(f"{op}_dpp v{v}, v{v}, v{v} row_ror:{s} {DPP}")
        if cross:
            for sw in ("v_permlane16_swap_b32", "v_permlane32_swap_b32"):
                a(f"v_mov_b32 v{tmp}, v{v}\n{sw} v{v}, v{tmp}\n{op} v{v}, v{v}, v{tmp}")
    def unpack(lo, hi, src):
        a(f"v_lshlrev_b32 v{lo}, 16, v{src}\nv_and_b32 v{hi}, {sMSK}, v{src}")
    def gemv(acc, W, rng, X, t0, t1):
        for i in rng:
            for k in range(4):
                unpack(t0, t1, W + 4 * i + k)
                op = "v_mul_f32" if i == 0 else "v_fmac_f32"
                a(f"{op} v{acc+2*k}, v{t0}, v{X+i}\n{op} v{acc+2*k+1}, v{t1}, v{X+i}")
    def reduce8(acc):
        for e in range(4): a(f"v_permlane32_swap_b32 v{acc+e}, v{acc+e+4}")
        for e in range(4): a(f"v_add_f32 v{acc+e}, v{acc+e}, v{acc+e+4}")
        for e in range(2): a(f"v_permlane16_swap_b32 v{acc+e}, v{acc+e+2}")
        for e in range(2): a(f"v_add_f32 v{acc+e}, v{acc+e}, v{acc+e+2}")
        for e in range(2): a(f"v_add_f32_dpp v{acc+e}, v{acc+e}, v{acc+e} row_ror:8 {DPP}")
    lab = [0]
    def giveup(n): return f"s_add_u32 {sRETRY}, {sRETRY}, 1\ns_cmp_ge_u32 {sRETRY}, 200000\ns_cbranch_scc1 Lok{n}"
    def poll(loads, check, sleep):
        lab[0] += 1; n = lab[0]
        a(f"Lchk{n}:")
        a.hist = []
        check()
        a(f"s_cbranch_vccz Lok{n}")
        a(giveup(n) + f"\ns_sleep {sleep}")
        cv = a.count_vm; a.count_vm = False; a.count_vm7 = False
        a("s_mov_b64 exec, vcc")
        for l in loads: a(l)
        a("s_mov_b64 exec, -1")
        a.count_vm = cv; a.count_vm7 = True
        a(f"s_waitcnt vmcnt(0)\ns_branch Lchk{n}")
        a(f"Lok{n}:")
    def lds_wait(off, val, t):
        lab[0] += 1; n = lab[0]
        a(f"v_mov_b32 v{t+1}, 0")
        a(f"Lchk{n}:")
        a(f"ds_read_b32 v{t}, v{t+1} offset:{off}\ns_waitcnt lgkmcnt(0)\nv_cmp_ne_u32 vcc, {val}, v{t}\ns_cbranch_vccz Lok{n}")
        a(giveup(n) + f"\ns_sleep 1\ns_branch Lchk{n}")
        a(f"Lok{n}:")
    def lds_signal(off, t):
        a(f"v_mov_b32 v{t}, 0\nv_mov_b32 v{t+1}, 1\ns_mov_b64 exec, 1\nds_add_u32 v{t}, v{t+1} offset:{off}\ns_mov_b64 exec, -1")
    def chk_sent(regs, t):
        def f():
            r = list(regs); cur = r.pop(0)
            while r:
                if len(r) >= 2:
                    a(f"v_max3_u32 v{t}, v{cur}, v{r[0]}, v{r[1]}"); r = r[2:]
                else:
                    a(f"v_max_u32 v{t}, v{cur}, v{r[0]}"); r = r[1:]
                cur = t
            a(f"v_cmp_eq_u32 vcc, -1, v{cur}")
        return f
    def w7_begin():
        lab[0] += 1; n = lab[0]
        a(f"s_cmp_lg_u32 s3, 7\ns_cbranch_scc1 Lw7_{n}")
        a.count_vm = False
        return n
    def w7_end(n):
        a(f"s_nop 1\nLw7_{n}:")
        a.count_vm = True

    a("s_cmp_ge_u32 s2, 256\ns_cbranch_scc1 L_end")
    if diag:
        a.raw(f"; stamps: {stamps}")
        for k in range(8): a(f"s_mov_b64 s[{84+2*k}:{85+2*k}], 0")
    stamp("start")
    if spin: a("s_memrealtime s[84:85]")
    a("s_load_dwordx16 s[4:19], s[0:1], 0\ns_load_dwordx8 s[20:27], s[0:1], 64")
    a("s_getpc_b64 s[82:83]")
    a(f"v_lshrrev_b32 v8, 6, v0\nv_and_b32 {LANE}, 63, v0\nv_lshlrev_b32 v9, 7, v0")
    a("v_readfirstlane_b32 s3, v8")
    a("s_cmp_ge_u32 s3, 2")
    a("s_cbranch_scc1 L_nopf")
    a.count_vm = False; a.count_vm7 = False
    a("global_load_dword v255, v9, s[82:83]")
    a.count_vm = True; a.count_vm7 = True
    a("L_nopf:")
    a(f"s_add_u32 s3, s3, {7 - cw}\ns_and_b32 s3, s3, 7")
    a(f"s_lshr_b32 {sG}, s2, 6\ns_and_b32 {sIDX}, s2, 63")
    a(f"s_mov_b32 {sMSK}, 0xffff0000")
    a(f"v_lshlrev_b32 {VOFF}, 4, {LANE}")
    a(f"v_lshrrev_b32 v8, 3, {LANE}")
    a(f"v_and_b32 v9, 7, {LANE}")
    a(f"v_lshlrev_b32 v10, 5, {LANE}")
    a("v_lshlrev_b32 v11, 3, v8")
    a("v_lshlrev_b32 v12, 4, v8")
    a("v_lshlrev_b32 v13, 15, v8\nv_lshl_add_u32 v13, v9, 4, v13")
    a(f"s_and_b32 {sT}, {sIDX}, 3\ns_lshl_b32 {sT}, {sT}, 8\ns_lshl_b32 {sT2}, s3, 5\ns_add_u32 {sT}, {sT}, {sT2}")
    a(f"s_lshl_b32 s80, {sT}, 1")
    a(f"s_lshl_b32 {sT}, {sT}, 13\ns_lshr_b32 {sT2}, s2, 2\ns_lshl_b32 {sT2}, {sT2}, 7\ns_add_u32 {sT}, {sT}, {sT2}")
    a("s_and_b32 s81, s2, 15\ns_lshl_b32 s81, s81, 7")
    a("s_waitcnt lgkmcnt(0)")
    a(f"s_add_u32 s62, s26, {EPO}\ns_addc_u32 s63, s27, 0\ns_load_dword {sTAG}, s[62:63], 0")
    srd(sX, 4, 2048)
    srd(sWQ, 10, 8 << 20)
    a.vmem(f"buffer_load_dwordx4 {q4(S)}, v10, {sX}, 0 offen")
    a.vmem(f"buffer_load_dwordx4 {q4(S+4)}, v10, {sX}, 0 offen offset:16")
    a.vmem(f"buffer_load_dwordx2 {q2(S+8)}, v11, {sX}, s80 offen")
    txa = a.vmem(f"buffer_load_dwordx4 {q4(S+12)}, v12, {sX}, s81 offen")
    twq = []
    for i in range(4):
        twq.append(a.vmem(f"buffer_load_dwordx4 {q4(WT+4*i)}, v13, {sWQ}, {sT} offen {pol}"))
        if i < 3: a(f"s_add_u32 {sT}, {sT}, 8192")
    a(f"v_and_b32 v10, 1, {LANE}\nv_lshlrev_b32 v10, 2, v10\nv_lshrrev_b32 v11, 5, {LANE}\nv_lshl_add_u32 v10, v11, 1, v10")
    a(f"s_lshl_b32 {sT}, s2, 3")
    a.vmem(f"buffer_load_ushort {XF}, v10, {sX}, {sT} offen")
    a("s_cmp_ge_u32 s2, 128\ns_cselect_b32 s48, s18, s16\ns_cselect_b32 s49, s19, s17")
    a(f"s_mov_b32 s50, {7<<20}\ns_mov_b32 s51, 0x20000")
    a(f"v_mul_u32_u24 {GOFF}, {8*7168}, v8\nv_lshl_add_u32 {GOFF}, v9, 4, {GOFF}")
    a(f"s_and_b32 {sGUO}, s2, 15\ns_mul_i32 {sGUO}, {sGUO}, {64*7168}\ns_bfe_u32 s80, s2, 0x30004\ns_mul_i32 s80, s80, 896\ns_add_u32 {sGUO}, {sGUO}, s80")
    a(f"s_lshl_b32 s80, s3, 7\ns_add_u32 {sGUO}, {sGUO}, s80")
    tk = {}
    sKS = "s83"
    PK, PV_, PW = 8, 40, 72
    def issue(p, depth):
        if p < PK:
            if p: a(f"s_add_u32 {sGUO}, {sGUO}, 7168")
            ins = f"buffer_load_dwordx4 {q4(WA+4*p)}, {GOFF}, {sGU}, {sGUO} offen {pol}"
        elif p < PV_:
            i = p - PK; t, qd = divmod(i, 4)
            if qd == 0: a(f"s_xor_b32 {sKS}, {sKVB}, {stepoff(t) ^ (((oracle[0] & 2) << 12) if oracle else 0)}")
            ins = f"buffer_load_dwordx4 {q4(KV+4*i)}, {KOFF}, {sK}, {sKS} offen offset:{(qd>>1)*512 + (qd&1)*128} {polk}"
        elif p < PW:
            i = p - PV_; t, qd = divmod(i, 4)
            if qd == 0: a(f"s_xor_b32 {sKS}, {sKVB}, {stepoff(t) ^ (((oracle[1] & 2) << 12) if oracle else 0)}")
            ins = f"buffer_load_dwordx4 {q4(KV+4*i)}, {VOFF}, {sV}, {sKS} offen offset:{qd*1024} {polv}"
        elif p < 76:
            i = p - 72
            if i == 0 and wbar: a("s_barrier")
            if i == 2: a(f"s_add_u32 {sWDO}, {sWDO}, 4096")
            ins = f"buffer_load_dwordx4 {q4(WT+16+4*i)}, v15, {sWD}, {sWDO} offen offset:{(i&1)*2048} {pol}"
        else:
            i = p - 76
            if i: a(f"s_add_u32 {sWOO}, {sWOO}, 16384")
            ins = f"buffer_load_dwordx4 {q4(WT+4*i)}, v14, {sWO}, {sWOO} offen {pol}"
        if depth == "w7free":
            lab[0] += 1
            a(f"s_cmp_eq_u32 s3, 7\ns_cbranch_scc1 Lfr{lab[0]}")
            a.wait_vm(tk[p - N])
            a(f"Lfr{lab[0]}:")
        elif depth: a.wait_vm(tk[p - depth])
        tk[p] = a.vmem(ins)
    a("s_barrier")
    srd(sWS, 26, 256 << 20)
    a(f"s_mul_i32 {sOWN}, s2, {STR}")
    a("s_cmp_eq_u32 s3, 7\ns_cbranch_scc1 L_nogu")
    a.count_vm7 = False
    for p in range(early): issue(p, 0)
    a.count_vm7 = True
    a("L_nogu:")
    srd(sK, 6, 64 << 20)
    a(f"s_mov_b32 {sKVB}, 0")
    if oracle: a("s_getreg_b32 s80, hwreg(HW_REG_XCC_ID)")
    for t, cval in con.items():
        if t[0] in 'gwx':
            src = {'g': 's2', 'w': 's3', 'x': 's80'}[t[0]]
            a(f"s_bfe_u32 {sT}, {src}, {(1<<16) | int(t[1])}\ns_mul_i32 {sT}, {sT}, {cval}\ns_xor_b32 {sKVB}, {sKVB}, {sT}")
    srd(sV, 8, 64 << 20)
    srd(sWO, 12, 8 << 20)
    srd(sWD, 20, 7 << 20)
    srd(sOUT, 22, 2048)
    a(f"s_and_b32 {sHH}, s2, 7\ns_lshl_b32 {sHH}, {sHH}, 2\ns_bfe_u32 {sT}, s2, 0x20003\ns_add_u32 {sHH}, {sHH}, {sT}")
    a(f"s_lshr_b32 {sCB}, s2, 5")
    a(f"s_and_b32 s80, s3, 1\ns_lshl_b32 s80, s80, 6\ns_lshr_b32 s81, s3, 1\ns_add_u32 s80, s80, s81\ns_lshl_b32 s81, {sHH}, 7\ns_add_u32 s80, s80, s81")
    a(f"s_lshl_b32 s80, s80, 11\ns_lshl_b32 s81, {sCB}, 8\ns_add_u32 {sWOO}, s80, s81")
    a(f"s_mul_i32 s80, {sHH}, 112\ns_lshl_b32 s82, s3, 4\ns_add_u32 s80, s80, s82\ns_lshl_b32 s80, s80, 11\ns_add_u32 {sWDO}, s81, s80")

    a("s_cmp_lg_u32 s3, 7\ns_cbranch_scc1 L_gu_done")
    a.count_vm = False
    if touch:
        a("s_mov_b64 exec, 1")
        for sr, so in ((sK, sKVB), (sV, sKVB), (sWO, sWOO), (sWD, sWDO), (sOUT, "0")):
            a(f"buffer_load_dword v{WA+4}, off, {sr}, {so}")
        a("s_mov_b64 exec, -1")
    for k in range(4): a(f"v_mov_b32 v{WA+k}, -1")
    for i in range(4):
        a(f"buffer_store_dwordx4 {q4(WA)}, {VOFF}, {sWS}, {sOWN} offen offset:{1024*i} sc1")
    a(f"s_add_u32 {sT}, {sOWN}, 4096")
    a(f"buffer_store_dwordx4 {q4(WA)}, {VOFF}, {sWS}, {sT} offen sc1")
    a.count_vm = True
    a("L_gu_done:")
    a(f"v_and_b32 {KOFF}, 3, {LANE}\nv_lshlrev_b32 {KOFF}, 10, {KOFF}")
    a(f"v_bfe_u32 v10, {LANE}, 2, 1\nv_lshl_add_u32 {KOFF}, v10, 8, {KOFF}")
    a(f"v_bfe_u32 v10, {LANE}, 3, 1\nv_lshl_add_u32 {KOFF}, v10, 6, {KOFF}")
    a(f"v_lshrrev_b32 v10, 4, {LANE}\nv_lshl_add_u32 {KOFF}, v10, 4, {KOFF}")
    a(f"s_mov_b32 {sPLO}, 0x05040100\ns_mov_b32 {sPHI}, 0x07060302\ns_mov_b32 {sL2E}, 0x3fb8aa3b\ns_mov_b32 {sSCL}, 0x3db504f3")
    a(f"s_mov_b32 {sRETRY}, 0")
    a(f"v_mov_b32 v10, 0\nv_mov_b32 v11, 0\nds_write_b64 v10, v[10:11] offset:{L_CNT}\nds_write_b64 v10, v[10:11] offset:{L_CNT+8}")
    a(f"s_cmp_eq_u32 s3, 7\ns_cselect_b32 {sOOB}, 0x40000000, 0")
    def wait_early(t, t7):
        n, n7 = a.vm - t, a.vm7 - t7
        lab[0] += 1
        a(f"s_waitcnt vmcnt({max(n, n7)})")
        if n != n7:
            a(f"s_cmp_{'eq' if n < n7 else 'lg'}_u32 s3, 7\ns_cbranch_scc1 Lwe{lab[0]}\ns_waitcnt vmcnt({min(n, n7)})\nLwe{lab[0]}:")
    wait_early(txa, txa)
    stamp("xarr")
    X = S + 16
    for i in range(8): unpack(X + 2 * i, X + 2 * i + 1, S + i)
    a(f"v_add_f32 v8, v{X}, v{X+1}\nv_add_f32 v9, v{X+2}, v{X+3}")
    for i in range(4, 16, 2): a(f"v_add_f32 v8, v8, v{X+i}\nv_add_f32 v9, v9, v{X+i+1}")
    a("v_add_f32 v8, v8, v9")
    allreduce(8, "v_add_f32", 9)
    a("v_mul_f32 v8, 0x3a800000, v8")
    for i in range(16): a(f"v_sub_f32 v{X+i}, v{X+i}, v8")
    a(f"v_mul_f32 v10, v{X}, v{X}\nv_mul_f32 v9, v{X+1}, v{X+1}")
    for i in range(2, 16, 2): a(f"v_fmac_f32 v10, v{X+i}, v{X+i}\nv_fmac_f32 v9, v{X+i+1}, v{X+i+1}")
    a("v_add_f32 v10, v10, v9")
    allreduce(10, "v_add_f32", 9)
    a("v_mul_f32 v10, 0x3a800000, v10")
    a("v_cvt_pk_bf16_f32 v9, v8, v10")
    unpack(8, 10, 9)
    a("v_add_f32 v10, 0x3727c5ac, v10\nv_cvt_pk_bf16_f32 v10, v10, v10\nv_lshlrev_b32 v10, 16, v10")
    a("v_sqrt_f32 v10, v10\nv_cvt_pk_bf16_f32 v10, v10, v10\nv_lshlrev_b32 v10, 16, v10\nv_rcp_f32 v10, v10")
    def normalize(lo, src):
        hi = lo + 1
        unpack(lo, hi, src)
        a(f"v_sub_f32 v{lo}, v{lo}, v8\nv_sub_f32 v{hi}, v{hi}, v8\nv_cvt_pk_bf16_f32 v9, v{lo}, v{hi}")
        unpack(lo, hi, 9)
        a(f"v_mul_f32 v{lo}, v{lo}, v10\nv_mul_f32 v{hi}, v{hi}, v10\nv_cvt_pk_bf16_f32 v9, v{lo}, v{hi}")
        unpack(lo, hi, 9)
    XQ = X
    for i in range(2): normalize(XQ + 2 * i, S + 8 + i)
    QA = WT + 16
    for i in range(4):
        wait_early(twq[i], twq[i])
        gemv(QA, WT, [i], XQ, 11, 9)
    stamp("wqarr")
    reduce8(QA)
    a(f"v_and_b32 v11, 7, {LANE}\nv_lshlrev_b32 v11, 5, v11\nv_lshrrev_b32 v9, 4, {LANE}\nv_lshl_add_u32 v13, v9, 3, v11")
    a(f"s_lshl_b32 {sT}, s3, 8\nv_add_u32 v11, {sT}, v13")
    a(f"ds_write_b64 v11, {q2(QA)} offset:{L_RED}")
    if early < 8:
        a("s_cmp_eq_u32 s3, 7\ns_cbranch_scc1 L_nogu2")
        a.count_vm7 = False
        for p in range(early, 8): issue(p, 0)
        a.count_vm7 = True
        a("s_branch L_gu2_done\nL_nogu2:\ns_waitcnt vmcnt(0)\nL_gu2_done:")
    a("s_waitcnt lgkmcnt(0)\ns_barrier")
    stamp("B1")
    a(f"s_add_u32 {sTAG}, {sTAG}, 1")
    n7 = w7_begin()
    a("s_mov_b64 exec, 0xffff")
    for w in range(8): a(f"ds_read_b128 {q4(WT+4*w)}, {VOFF} offset:{L_RED+256*w}")
    a(f"s_mul_i32 s80, s2, {fstr}\ns_add_u32 s80, s80, {FLG}\ns_add_u32 {sT}, {sOWN}, 4096")
    a(f"v_mov_b32 v11, {sTAG}")
    a("s_waitcnt lgkmcnt(0)")
    for st in (16, 8, 4):
        for k in range(st): a(f"v_add_f32 v{WT+k}, v{WT+k}, v{WT+st+k}")
    for k in range(4):
        a(f"s_mov_b32 s81, {0x07060500 + k}\nv_perm_b32 v{WT+16+k}, v{WT+k}, v11, s81")
    a(f"buffer_store_dwordx4 {q4(WT+16)}, {VOFF}, {sWS}, {sT} offen offset:{O_QP-4096} sc1")
    a("s_mov_b64 exec, 1")
    a(f"buffer_store_dword v11, off, {sWS}, s80 sc1")
    a("s_mov_b64 exec, -1")
    stamp("qpub")
    w7_end(n7)
    for i in range(4): normalize(XA + 2 * i, S + 12 + i)

    at = {}
    def sched(p, f):
        nm = getattr(f, "__qualname__", "")
        if exp:
            keep = exp.split()
            if not any(k in nm for k in keep): return
        at.setdefault(p, []).append(f)
    st7 = {}
    PF = WT + 12
    if fstr == 4: pl = [f"buffer_load_dwordx4 {q4(PF)}, {VOFF}, {sWS}, s82 offen sc1"]
    else: pl = [f"buffer_load_dword v{PF+k}, v11, {sWS}, s82 offen offset:{k*fstr} sc1" for k in range(4)]
    def c_poll_issue():
        n = w7_begin()
        a(f"s_mov_b32 s82, {FLG}\nv_mul_u32_u24 v11, {4*fstr}, {LANE}")
        for l in pl: a(l)
        st7["poll"] = a.vm7
        w7_end(n)
    def c_poll_check():
        n = w7_begin()
        stamp("prepoll")
        a.wait_vm7(st7["poll"])
        def chk():
            for k in range(4): a(f"v_xor_b32 v{8+(k>0)}, {sTAG}, v{PF+k}" + ("\nv_or_b32 v8, v8, v9" if k else ""))
            a("v_cmp_ne_u32 vcc, 0, v8")
        poll(pl, chk, slp)
        stamp("pollok")
        lds_signal(L_CNT + 12, 8)
        w7_end(n)
    ql = [f"buffer_load_dwordx4 {q4(S+4*t)}, v10, {sWS}, s{16+t} offen sc1" for t in range(2)]
    def c_qg_issue():
        a(f"v_bfe_u32 v8, {LANE}, 4, 1\nv_lshrrev_b32 v9, 5, {LANE}\nv_lshl_add_u32 v8, v8, 2, v9\nv_mul_u32_u24 v8, {STR}, v8")
        a(f"v_and_b32 v9, 15, {LANE}\nv_lshl_add_u32 v10, v9, 4, v8")
        a(f"s_lshl_b32 s16, {sG}, 3\ns_add_u32 s16, s16, s3\ns_mul_i32 s16, s16, {8*STR}\ns_add_u32 s16, s16, {O_QP}\ns_add_u32 s17, s16, {2*STR}")
        for l in ql: tk["q"] = a.vmem(l)
    def c_qg_use():
        a("s_mov_b32 s80, 0x0c0c0400")
        stamp("preF")
        a.wait_vm(tk["q"])
        def chk():
            for t in range(2):
                b = S + 4 * t
                a(f"v_perm_b32 v8, v{b+1}, v{b}, s80\nv_perm_b32 v9, v{b+3}, v{b+2}, s80\nv_lshl_or_b32 v{11+t}, v9, 16, v8")
            a(f"v_xor_b32 v11, {sTAG}, v11\nv_xor_b32 v12, {sTAG}, v12\nv_or_b32 v11, v11, v12\nv_cmp_ne_u32 vcc, 0, v11")
        poll(ql, chk, slp)
        stamp("Fok")
        a(f"v_and_b32 v9, 31, {LANE}\nv_lshlrev_b32 v9, 3, v9\ns_mul_i32 s80, s3, {QSTR}\nv_add_u32 v10, s80, v9")
        a("s_movk_i32 s81, 0xff00")
        a("v_mov_b32 v8, 0x80")
        for k in range(8): a(f"v_and_or_b32 v{S+k}, v{S+k}, s81, v8")
        for k in range(4): a(f"v_add_f32 v{S+k}, v{S+k}, v{S+4+k}")
        for k in range(4): a(f"v_mov_b32 v{S+4+k}, v{S+k}")
        for k in range(4): a(f"v_permlane32_swap_b32 v{S+k}, v{S+4+k}")
        for k in range(4): a(f"v_add_f32 v{S+k}, v{S+k}, v{S+4+k}")
        a(f"v_cvt_pk_bf16_f32 v{S}, v{S}, v{S+1}\nv_cvt_pk_bf16_f32 v{S+1}, v{S+2}, v{S+3}")
        a(f"ds_write_b64 v10, {q2(S)} offset:{L_Q}")
        lds_signal(L_CNT, 8)
    def c_readq():
        a(f"v_and_b32 v10, 7, {LANE}\nv_mul_u32_u24 v10, {QSTR}, v10\nv_bfe_u32 v11, {LANE}, 3, 1\nv_lshl_add_u32 v10, v11, 6, v10\nv_lshrrev_b32 v11, 4, {LANE}\nv_lshl_add_u32 v10, v11, 4, v10")
        stamp("preQ")
        lds_wait(L_CNT, 8, 8)
        a(f"ds_read_b128 {q4(Q)}, v10 offset:{L_Q}\nds_read_b128 {q4(Q+4)}, v10 offset:{L_Q+128}")
        a("s_waitcnt lgkmcnt(0)")
        stamp("Qrdy")
    ACC = WT
    def c_qk(t):
        def f():
            b = KV + 16 * t; c = ACC; s = S + 4 * t
            a.wait_vm(tk[PK + 4 * t + 3])
            a(f"v_mfma_f32_16x16x32_bf16 {q4(c)}, {q4(b)}, {q4(Q)}, 0")
            a(f"v_mfma_f32_16x16x32_bf16 {q4(c+4)}, {q4(b+8)}, {q4(Q)}, 0")
            a(f"v_mfma_f32_16x16x32_bf16 {q4(c)}, {q4(b+4)}, {q4(Q+4)}, {q4(c)}")
            a(f"v_mfma_f32_16x16x32_bf16 {q4(c+4)}, {q4(b+12)}, {q4(Q+4)}, {q4(c+4)}")
            for i in range(4): a(f"v_permlane32_swap_b32 v{c+i}, v{c+4+i}")
            for i in range(4): a(f"v_add_f32_dpp v{c+i}, v{c+4+i}, v{c+i} row_ror:8 {DPP}")
            for i in (0, 2): a(f"v_cvt_pk_bf16_f32 v{c+4+i}, v{c+i}, v{c+i+1}")
            for i in (0, 2): unpack(c + i, c + i + 1, c + 4 + i)
            for i in range(4): a(f"v_mul_f32 v{c+i}, {sSCL}, v{c+i}")
            for i in (0, 2): a(f"v_cvt_pk_bf16_f32 v{c+4+i}, v{c+i}, v{c+i+1}")
            for i in (0, 2): unpack(s + i, s + i + 1, c + 4 + i)
            if t == 0: a(f"v_max_f32 {MW}, v{s}, v{s+1}")
            else: a(f"v_max3_f32 {MW}, {MW}, v{s}, v{s+1}")
            a(f"v_max3_f32 {MW}, {MW}, v{s+2}, v{s+3}")
        return f
    mw = int(MW[1:])
    def c_exp(part):
        def f():
            if part == 0:
                allreduce(mw, "v_max_f32", 9, steps=())
                a(f"v_mul_f32 v12, {sL2E}, {MW}")
            for i in range(8 * part, 8 * part + 8): a(f"v_fma_f32 v{S+i}, v{S+i}, {sL2E}, -v12")
            for i in range(8 * part, 8 * part + 8): a(f"v_exp_f32 v{S+i}, v{S+i}")
            for i in range(8 * part, 8 * part + 8, 2):
                if i == 0: a(f"v_add_f32 v11, v{S}, v{S+1}")
                else: a(f"v_add_f32 v9, v{S+i}, v{S+i+1}\nv_add_f32 v11, v11, v9")
                a(f"v_cvt_pk_bf16_f32 v{S+i//2}, v{S+i}, v{S+i+1}")
            if part == 3:
                allreduce(11, "v_add_f32", 9, steps=())
                a(f"v_mov_b32 v10, {MW}")
                a(f"v_lshlrev_b32 v8, 3, {LANE}\ns_lshl_b32 s80, s3, 6\nv_add_u32 v9, s80, v8")
                a(f"s_mov_b64 exec, 0xff\nds_write_b64 v9, v[10:11] offset:{L_MLW}\ns_mov_b64 exec, -1")
                lds_signal(L_CNT + 4, 8)
                stamp("Prdy")
        return f
    def c_el():
        lds_wait(L_CNT + 4, 8, 8)
        a(f"v_lshlrev_b32 v8, 3, {LANE}")
        a(f"ds_read_b64 v[10:11], v8 offset:{L_MLW}\ns_waitcnt lgkmcnt(0)")
        a(f"v_mul_f32 v10, {sL2E}, v10\nv_ceil_f32 v{WT+8}, v10")
        allreduce(WT + 8, "v_max_f32", 9, steps=(8,))
        a(f"v_sub_f32 v10, v10, v{WT+8}\nv_exp_f32 v10, v10\nv_mul_f32 v{WT+9}, v10, v11")
        allreduce(WT + 9, "v_add_f32", 9, steps=(8,))
        a(f"v_mov_b32_dpp {MW}, {MW} row_ror:8 row_mask:0xf bank_mask:0xc")
        a(f"v_mul_f32 v10, {sL2E}, {MW}\nv_sub_f32 v10, v10, v{WT+8}\nv_exp_f32 {FS}, v10")
        n = w7_begin()
        a(f"v_min_u32 v{WT+8}, -2, v{WT+8}\nv_min_u32 v{WT+9}, -2, v{WT+9}")
        a(f"s_add_u32 {sT}, {sOWN}, {O_ML}\ns_mov_b64 exec, 0xff")
        a(f"buffer_store_dwordx2 {q2(WT+8)}, v8, {sWS}, {sT} offen sc1")
        a("s_mov_b64 exec, -1")
        stamp("mlpub")
        w7_end(n)
    GA = WT
    def c_gu(part):
        def f():
            a(f"s_cmp_eq_u32 s3, 7\ns_cbranch_scc1 Lgus{part}")
            if part < 4:
                a.wait_vm(tk[2 * part + 1])
                if part == 3: stamp("guarr")
                gemv(GA, WA, [2 * part, 2 * part + 1], XA, 8, 9)
            else:
                reduce8(GA)
                a(f"s_lshl_b32 {sT}, s3, 8\nv_add_u32 v8, {sT}, v13")
                a(f"ds_write_b64 v8, {q2(GA)} offset:{L_GU}")
                lds_signal(L_CNT + 8, 8)
            a(f"Lgus{part}:")
        return f
    def c_gupub():
        n = w7_begin()
        lds_wait(L_CNT + 8, 7, 8)
        a(f"ds_read_b128 {q4(WT+16)}, {VOFF} offset:{L_GU}\nds_read_b128 {q4(WT+20)}, {VOFF} offset:{L_GU+1024}")
        a(f"s_add_u32 {sT}, {sOWN}, 1024\ns_waitcnt lgkmcnt(0)")
        for k in range(8): a(f"v_min_u32 v{WT+16+k}, -2, v{WT+16+k}")
        a(f"buffer_store_dwordx4 {q4(WT+16)}, {VOFF}, {sWS}, {sOWN} offen offset:{O_GU} sc1")
        a("s_mov_b32 exec_hi, 0xffff")
        a(f"buffer_store_dwordx4 {q4(WT+20)}, {VOFF}, {sWS}, {sT} offen offset:{O_GU} sc1")
        a("s_mov_b64 exec, -1")
        stamp("gupub")
        w7_end(n)
    G = KV
    SEL = Q + 4
    gl = [f"buffer_load_dwordx2 {q2(G+8)}, v12, {sWS}, {sML} offen sc1",
          f"buffer_load_dwordx2 {q2(G+10)}, v12, {sWS}, {sQG} offen sc1",
          f"buffer_load_dwordx4 {q4(G)}, v13, {sWS}, {sH0} offen offset:{O_GU} sc1",
          f"buffer_load_dwordx4 {q4(G+4)}, v13, {sWS}, {sH1} offen offset:{O_GU} sc1"]
    def c_g_issue():
        a(f"v_lshrrev_b32 v12, 4, {LANE}\nv_mul_u32_u24 v12, {STR}, v12")
        a(f"s_and_b32 {sT}, {sHH}, 7\ns_mul_i32 {sT}, {sT}, 248\ns_sub_u32 {sML}, {sOG0}, {sT}\ns_add_u32 {sML}, {sML}, {O_ML}\ns_add_u32 {sQG}, {sML}, {4*STR}")
        a(f"v_lshrrev_b32 v8, 5, {LANE}\nv_mul_u32_u24 v8, {STR}, v8\nv_and_b32 v9, 31, {LANE}\nv_lshl_add_u32 v13, v9, 4, v8")
        a("v_cmp_lt_u32 vcc, 27, v9\nv_mov_b32 v8, 0x40000000\nv_cndmask_b32 v13, v13, v8, vcc")
        a(f"s_lshr_b32 {sH0}, {sHH}, 2\ns_lshl_b32 {sH0}, {sH0}, 3\ns_add_u32 {sH0}, {sH0}, s3\ns_mul_i32 {sH0}, {sH0}, {2*STR}")
        a(f"s_and_b32 {sT}, {sHH}, 3\ns_mul_i32 {sT}, {sT}, 448\ns_add_u32 {sH0}, {sH0}, {sT}\ns_add_u32 {sH1}, {sH0}, {128*STR}")
        lds_wait(L_CNT + 12, 1, 8)
        for l in gl: tk["g"] = a.vmem(l)
    def c_g_use():
        stamp("preg")
        a.wait_vm(tk["g"])
        poll(gl, chk_sent(range(G, G + 12), 8), slp)
        stamp("gok")
        a(f"v_max_f32 v10, v{G+8}, v{G+10}")
        allreduce(10, "v_max_f32", 9, steps=())
        a(f"v_sub_f32 v8, v{G+8}, v10\nv_sub_f32 v9, v{G+10}, v10\nv_exp_f32 v8, v8\nv_exp_f32 v9, v9\nv_mul_f32 v11, v8, v{G+9}\nv_fmac_f32 v11, v9, v{G+11}")
        allreduce(11, "v_add_f32", 9, steps=())
        a(f"s_lshl_b32 s80, s3, 3\nv_mov_b32 v8, s80")
        a(f"ds_write_b64 v8, v[10:11] offset:{L_MLG}")
        for k in range(4): a(f"v_permlane32_swap_b32 v{G+k}, v{G+4+k}")
        for k in range(4): a(f"v_add_f32 v{G+k}, v{G+k}, v{G+4+k}")
        a(f"s_lshl_b32 s80, s3, 10\nv_add_u32 v8, s80, {VOFF}")
        a(f"ds_write_b128 v8, {q4(G)} offset:{L_HRED}")
    AO = Q
    A1 = KV + 16
    INVL = KV + 24
    def c_wts():
        a(f"v_and_b32 v12, 7, {LANE}\nv_lshlrev_b32 v13, 3, v12")
        a(f"v_lshlrev_b32 v12, 10, v12\nv_bfe_u32 v9, {LANE}, 3, 1\nv_lshl_add_u32 v12, v9, 9, v12\nv_lshrrev_b32 v9, 4, {LANE}\nv_lshl_add_u32 v12, v9, 4, v12")
        a(f"s_lshl_b32 s80, s3, 6\nv_add_u32 v12, s80, v12")
        a(f"ds_read_b64 v[10:11], v13 offset:{L_MLG}\nds_read_b128 {q4(G)}, v12 offset:{L_HRED}\ns_waitcnt lgkmcnt(0)")
        a("v_mov_b32 v12, v10")
        for m in ("quad_perm:[1,0,3,2]", "quad_perm:[2,3,0,1]", "row_half_mirror"): a(f"v_max_f32_dpp v12, v12, v12 {m} {DPP}")
        a("v_sub_f32 v10, v10, v12\nv_exp_f32 v10, v10\nv_mul_f32 v11, v10, v11")
        for m in ("quad_perm:[1,0,3,2]", "quad_perm:[2,3,0,1]", "row_half_mirror"): a(f"v_add_f32_dpp v11, v11, v11 {m} {DPP}")
        a(f"v_rcp_f32 v{INVL}, v11")
        for t in range(2):
            a(f"v_sub_f32 v8, v{G+8+2*t}, v12\nv_exp_f32 v8, v8\nv_cvt_pk_bf16_f32 v8, v8, v8")
            for k in range(4): a(f"v_and_b32 v{A1+4*t+k}, v8, v{SEL+k}")
    def c_h():
        for m in ("quad_perm:[1,0,3,2]", "quad_perm:[2,3,0,1]", "row_half_mirror"):
            for k in range(4): a(f"v_add_f32_dpp v{G+k}, v{G+k}, v{G+k} {m} {DPP}")
        for i in (0, 2): a(f"v_cvt_pk_bf16_f32 v{G+4+i}, v{G+i}, v{G+i+1}")
        for i in (0, 2): unpack(G + i, G + i + 1, G + 4 + i)
        for k in range(4): a(f"v_mov_b32_dpp v{G+4+k}, v{G+k} row_ror:8 {DPP}")
    def c_h2():
        a("s_mov_b32 s80, 0x3d372713\ns_mov_b32 s81, 0xc0135761")
        for k in range(4): a(f"v_mul_f32 v{G+8+k}, v{G+k}, v{G+k}")
        for k in range(4): a(f"v_fma_f32 v{G+8+k}, v{G+8+k}, s80, 1.0")
        for k in range(4): a(f"v_mul_f32 v{G+8+k}, v{G+8+k}, v{G+k}")
        for k in range(4): a(f"v_mul_f32 v{G+8+k}, s81, v{G+8+k}")
        for k in range(4): a(f"v_exp_f32 v{G+8+k}, v{G+8+k}")
        for k in range(4): a(f"v_add_f32 v{G+8+k}, 1.0, v{G+8+k}")
        for k in range(4): a(f"v_rcp_f32 v{G+8+k}, v{G+8+k}")
        for k in range(4): a(f"v_mul_f32 v{G+k}, v{G+k}, v{G+8+k}")
        for i in (0, 2): a(f"v_cvt_pk_bf16_f32 v{G+8+i}, v{G+i}, v{G+i+1}")
        for i in (0, 2): unpack(G + i, G + i + 1, G + 8 + i)
        for k in range(4): a(f"v_mul_f32 v{G+k}, v{G+k}, v{G+4+k}")
        for k in range(4): a(f"v_mov_b32 v{AO+k}, 0")
        a("s_mov_b32 exec_lo, 0x00020002\ns_mov_b32 exec_hi, 0x00020002")
        a(f"v_cvt_pk_bf16_f32 v{AO+2}, v{G}, v{G+1}\nv_cvt_pk_bf16_f32 v{AO+3}, v{G+2}, v{G+3}")
        a("s_mov_b64 exec, -1")
        stamp("hrdy")
    VT = S + 16
    def transp(dst, b, e, nq=4):
        sel = sPHI if e & 1 else sPLO
        for t in range(nq):
            a(f"v_perm_b32 v{dst+t}, v{b+8*t+4+(e>>1)}, v{b+8*t+(e>>1)}, {sel}")
    def c_pv(tau):
        def f():
            b = KV + 32 * tau
            a.wait_vm(tk[40 + 8 * tau + 7])
            if tau == 3: stamp("Vend")
            transp(VT, b, 0)
            for e in range(8):
                if e < 7: transp(VT + 4 * ((e + 1) & 1), b, e + 1)
                c = q4(WA + 4 * e) if tau else "0"
                a(f"v_mfma_f32_16x16x32_bf16 {q4(WA+4*e)}, {q4(VT+4*(e&1))}, {q4(S+4*tau)}, {c}")
        return f
    def c_addr1():
        a(f"v_lshrrev_b32 v8, 5, {LANE}\nv_lshlrev_b32 v8, 16, v8\nv_bfe_u32 v9, {LANE}, 4, 1\nv_lshl_add_u32 v8, v9, 13, v8")
        a(f"v_and_b32 v9, 15, {LANE}\nv_lshl_add_u32 v14, v9, 4, v8")
        a(f"v_lshrrev_b32 v8, 4, {LANE}\nv_lshlrev_b32 v8, 13, v8\nv_lshl_add_u32 v15, v9, 4, v8\nv_add_u32 v15, {sOOB}, v15")
        a(f"v_and_b32 v8, 7, {LANE}\nv_mul_u32_u24 v8, {OWH}, v8\nv_lshrrev_b32 v9, 3, {LANE}\nv_lshl_add_u32 v8, v9, 4, v8\ns_mul_i32 s80, s3, {OWW}\nv_add_u32 v16, s80, v8")
        a(f"s_mul_i32 s80, s3, {OWH}\nv_lshlrev_b32 v17, 3, {LANE}\nv_add_u32 v17, s80, v17")
        a(f"v_lshlrev_b32 v18, 2, {LANE}")
        a(f"s_lshl_b32 {sOPS}, s3, 8\ns_add_u32 {sOPS}, {sOPS}, {sOWN}")
        a(f"v_lshrrev_b32 v8, 4, {LANE}\nv_mul_u32_u24 v8, {STR}, v8\nv_and_b32 v9, 15, {LANE}\nv_lshl_add_u32 v19, v9, 4, v8")
        a(f"s_lshr_b32 {sOG0}, {sHH}, 3\ns_lshl_b32 {sOG0}, {sOG0}, 3\ns_add_u32 {sOG0}, {sOG0}, s3\ns_mul_i32 {sOG0}, {sOG0}, {8*STR}\ns_and_b32 s80, {sHH}, 7\ns_lshl_b32 s80, s80, 8\ns_add_u32 {sOG0}, {sOG0}, s80")
        a(f"s_add_u32 {sOG1}, {sOG0}, {4*STR}")
    def c_addr2():
        a(f"v_and_b32 v8, 1, {LANE}\nv_lshlrev_b32 v8, 4, v8\nv_mov_b32 v9, 0xffff\nv_lshlrev_b32 v9, v8, v9\nv_bfe_u32 v8, {LANE}, 1, 2")
        for k in range(4):
            a(f"v_cmp_eq_u32 vcc, {k}, v8\nv_cndmask_b32 v{SEL+k}, 0, v9, vcc")
        a(f"v_and_b32 v8, 15, {LANE}\nv_lshlrev_b32 v20, 5, v8\nv_bfe_u32 v9, {LANE}, 4, 1\nv_lshl_add_u32 v20, v9, 4, v20\ns_lshl_b32 s80, s3, 9\nv_add_u32 v20, s80, v20")
        a(f"v_and_b32 v9, 7, {LANE}\nv_lshlrev_b32 v21, 9, v9\nv_lshrrev_b32 v9, 4, {LANE}\nv_lshl_add_u32 v21, v9, 4, v21\ns_lshl_b32 s80, s3, 6\nv_add_u32 v21, s80, v21")
        a(f"v_lshlrev_b32 v22, 6, v8\ns_lshl_b32 s80, s3, 10\nv_add_u32 v22, s80, v22")
        a(f"v_lshrrev_b32 v8, 1, {LANE}\nv_mul_u32_u24 v8, {STR}, v8\nv_and_b32 v9, 1, {LANE}\nv_lshl_add_u32 v23, v9, 4, v8")
        a(f"s_mul_i32 {sSDG}, {sCB}, {32*STR}\ns_and_b32 s80, s2, 31\ns_lshl_b32 s80, s80, 5\ns_add_u32 {sSDG}, {sSDG}, s80")
        a(f"v_lshlrev_b32 {XF}, 16, {XF}")
    def c_touch():
        n = w7_begin()
        a("s_mov_b64 exec, 1")
        a(f"buffer_load_dword v{WA}, off, {sV}, {sKVB}")
        a(f"buffer_load_dword v{WA}, off, {sWO}, {sWOO}")
        a(f"buffer_load_dword v{WA}, off, {sWD}, {sWDO}")
        a(f"buffer_load_dword v{WA}, off, {sOUT}, 0")
        a("s_mov_b64 exec, -1")
        w7_end(n)
    deep = set(range(PK, PK + relax))
    p = PK + N
    for part in range(5): sched(p + part, c_gu(part))
    sched(p + 5, c_addr1)
    sched(kp, c_poll_issue)
    sched(kp + N + 2, c_poll_check)
    assert kp + N + 2 < vg
    sched(kg, c_qg_issue)
    sched(kg + N + 1, c_qg_use)
    assert kq > kg + N + 1
    sched(kq, c_readq)
    p = kq
    for t in range(8):
        p = max(p + 1, PK + 4 * t + 3 + N + 1)
        assert p <= PV_ + 4 * t
        sched(p, c_qk(t))
    for part in range(4):
        p += 1; sched(p, c_exp(part))
    sched(p + 1, c_addr2)
    sched(p + 4, c_el)
    sched(p + 4, c_gupub)
    deep |= set(range(p + 4, p + 4 + relax))
    p += 1
    for tau in range(3):
        p = max(p + 1, PV_ + 8 * tau + 7 + N + 1)
        sched(p, c_pv(tau))
        if tau == 0: assert vg > p
    sched(vg, c_g_issue)
    for p in range(PK, 80):
        for f in at.pop(p, []): f()
        if "now" in exp and p >= PW: tk[p] = a.vm
        else: issue(p, NW if p >= PW else 'w7free' if p in deep else N)
        stamp(f"p{p}")
    assert not at, at.keys()
    if exp:
        a.wait_vm(tk[71])
        stamp("PVend")
        a("s_waitcnt vmcnt(0)")
        stamp("end")
        a("s_branch L_fin")
    c_g_use()
    c_pv(3)()
    stamp("PVend")
    for e in range(4):
        for i in range(4):
            a(f"v_mov_b32_dpp v{WA+4*e+i}, v{WA+4*(e+4)+i} row_ror:8 row_mask:0xf bank_mask:0xc")
        for i in range(4):
            a(f"v_mul_f32 v{WA+4*e+i}, {FS}, v{WA+4*e+i}")
        a(f"ds_write_b128 v16, {q4(WA+4*e)} offset:{L_OW+128*e}")
    a("s_waitcnt lgkmcnt(0)\ns_barrier")
    stamp("B5")
    R = S
    for w in range(8): a(f"ds_read_b64 {q2(R+2*w)}, v17 offset:{L_OW+OWW*w}")
    a("s_waitcnt lgkmcnt(0)")
    for st in (8, 4, 2):
        for k in range(st): a(f"v_add_f32 v{R+k}, v{R+k}, v{R+st+k}")
    a(f"v_cvt_pk_bf16_f32 v{R}, v{R}, v{R+1}\nv_min_u32 v{R}, -2, v{R}")
    for k in (1, 2, 3): a(f"v_mov_b32_dpp v{R+k}, v{R} quad_perm:[{k},{k},{k},{k}] {DPP}")
    a("s_mov_b32 exec_lo, 0x11111111\ns_mov_b32 exec_hi, 0x11111111")
    a.vmem(f"buffer_store_dwordx4 {q4(R)}, v18, {sWS}, {sOPS} offen sc1")
    a("s_mov_b64 exec, -1")
    stamp("opub")
    GO = S + 8
    ol = [f"buffer_load_dwordx4 {q4(GO)}, v19, {sWS}, {sOG0} offen sc1",
          f"buffer_load_dwordx4 {q4(GO+4)}, v19, {sWS}, {sOG1} offen sc1"]
    for l in ol: to = a.vmem(l)
    c_wts(); c_h(); c_h2()
    BW = KV + 32
    a.wait_vm(tk[79])
    stamp("Wend")
    for e in range(8): transp(BW + 4 * e, WT, e)
    a.wait_vm(to)
    poll(ol, chk_sent(range(GO, GO + 8), 8), slp_tail)
    stamp("hop1")
    a(f"v_mfma_f32_16x16x32_bf16 {q4(R)}, {q4(A1)}, {q4(GO)}, 0")
    a(f"v_mfma_f32_16x16x32_bf16 {q4(R)}, {q4(A1+4)}, {q4(GO+4)}, {q4(R)}")
    a(f"ds_write_b128 v20, {q4(R)} offset:{L_ORED}")
    a("s_waitcnt lgkmcnt(0)\ns_barrier")
    stamp("B6")
    a(f"ds_read_b128 {q4(R)}, v21 offset:{L_ORED}\ns_waitcnt lgkmcnt(0)")
    for m in ("quad_perm:[1,0,3,2]", "quad_perm:[2,3,0,1]", "row_half_mirror"):
        for k in range(4): a(f"v_add_f32_dpp v{R+k}, v{R+k}, v{R+k} {m} {DPP}")
    for k in range(4): a(f"v_mul_f32 v{R+k}, v{R+k}, v{INVL}")
    a("s_mov_b32 exec_lo, 0x00010001\ns_mov_b32 exec_hi, 0x00010001")
    a(f"v_cvt_pk_bf16_f32 v{AO}, v{R}, v{R+1}\nv_cvt_pk_bf16_f32 v{AO+1}, v{R+2}, v{R+3}")
    a("s_mov_b64 exec, -1\ns_nop 1")
    for e in range(8): a(f"v_mfma_f32_16x16x32_bf16 {q4(WA+4*e)}, {q4(AO)}, {q4(BW+4*e)}, 0")
    a("s_mov_b64 exec, 0xffff")
    for e in range(8): a(f"ds_write_b64 v22, {q2(WA+4*e)} offset:{L_SW+8*e}")
    a("s_mov_b64 exec, -1")
    a("s_waitcnt lgkmcnt(0)\ns_barrier")
    stamp("B7")
    a("s_cmp_lg_u32 s3, 7\ns_cbranch_scc1 " + ("L_fin" if diag else "L_end"))
    for w in range(8): a(f"ds_read_b128 {q4(R+4*w)}, {VOFF} offset:{L_SW+1024*w}")
    a("s_waitcnt lgkmcnt(0)")
    for st in (16, 8, 4):
        for k in range(st): a(f"v_add_f32 v{R+k}, v{R+k}, v{R+st+k}")
    for k in range(4): a(f"v_min_u32 v{R+k}, -2, v{R+k}")
    a.vmem(f"buffer_store_dwordx4 {q4(R)}, {VOFF}, {sWS}, {sOWN} offen offset:{O_SD} sc1")
    stamp("spub")
    F = S + 8
    fl = [f"buffer_load_dwordx4 {q4(F)}, v23, {sWS}, {sSDG} offen offset:{O_SD} sc1"]
    tf = a.vmem(fl[0])
    a(f"v_and_b32 v10, 1, {LANE}\nv_lshlrev_b32 v10, 2, v10\nv_lshrrev_b32 v9, 5, {LANE}\nv_lshl_add_u32 v10, v9, 1, v10\ns_lshl_b32 s80, s2, 3")
    a.wait_vm(tf)
    poll(fl, chk_sent(range(F, F + 4), 8), slp_tail)
    stamp("hop2")
    a(f"v_permlane32_swap_b32 v{F}, v{F+2}\nv_permlane32_swap_b32 v{F+1}, v{F+3}")
    a(f"v_add_f32 v{F}, v{F}, v{F+2}\nv_add_f32 v{F+1}, v{F+1}, v{F+3}")
    a(f"v_permlane16_swap_b32 v{F}, v{F+1}\nv_add_f32 v{F}, v{F}, v{F+1}")
    for s in (2, 4, 8): a(f"v_add_f32_dpp v{F}, v{F}, v{F} row_ror:{s} {DPP}")
    a(f"v_mov_b32 v{F+1}, v{F}\nv_permlane16_swap_b32 v{F}, v{F+1}")
    a(f"v_cvt_pk_bf16_f32 v8, v{F}, v{F+1}")
    unpack(F, F + 1, 8)
    a(f"v_mul_f32 v8, {sL2E}, v{F+1}\nv_exp_f32 v8, -v8\nv_add_f32 v8, 1.0, v8\nv_rcp_f32 v8, v8\nv_mul_f32 v8, v8, v{F+1}")
    a(f"v_cvt_pk_bf16_f32 v8, v8, v8\nv_lshlrev_b32 v8, 16, v8\nv_mul_f32 v8, v8, v{F}")
    a(f"v_cvt_pk_bf16_f32 v8, v8, v8\nv_lshlrev_b32 v8, 16, v8\nv_add_f32 v8, v8, {XF}\nv_cvt_pk_bf16_f32 v8, v8, v8")
    a("s_mov_b32 exec_lo, 3\ns_mov_b32 exec_hi, 3")
    a.vmem(f"buffer_store_short v8, v10, {sOUT}, s80 offen")
    a(f"s_cmp_lg_u32 s2, 0\ns_cbranch_scc1 L_noep\ns_mov_b64 exec, 1\nv_mov_b32 v9, {sTAG}\ns_mov_b32 s80, {EPO}")
    a(f"buffer_store_dword v9, off, {sWS}, s80 sc1\nL_noep:")
    if diag:
        stamp("fin")
        a("s_mov_b64 exec, -1\ns_waitcnt vmcnt(0)")
        stamp("end")
        a("L_fin:")
        a("s_waitcnt lgkmcnt(0)")
        for k in range(16): a(f"v_mov_b32 v{S+k}, s{84+k}")
        a(f"s_getreg_b32 s80, hwreg(HW_REG_XCC_ID)\nv_mov_b32 v{S+16}, s80\nv_mov_b32 v{S+17}, {sRETRY}")
        a(f"s_lshl_b32 s80, s2, 3\ns_add_u32 s80, s80, s3\ns_lshl_b32 s80, s80, 7\ns_add_u32 s80, s80, {STAMP_OFF}")
        a("s_mov_b64 exec, 1")
        for k in range(4): a(f"buffer_store_dwordx4 {q4(S+4*k)}, off, {sWS}, s80 offset:{16*k}")
        a(f"buffer_store_dwordx2 {q2(S+16)}, off, {sWS}, s80 offset:64")
    if spin:
        if spinx is not None:
            a(f"s_getreg_b32 s80, hwreg(HW_REG_XCC_ID)\ns_and_b32 s80, s80, 7\ns_cmp_lg_u32 s80, {spinx}\ns_cbranch_scc1 L_end")
        a(f"L_spin:\ns_sleep 2\ns_memrealtime s[86:87]\ns_waitcnt lgkmcnt(0)\ns_sub_u32 s86, s86, s84\ns_cmp_lt_u32 s86, {spin*100}\ns_cbranch_scc1 L_spin")
    a("L_end:\ns_endpgm")
    body = a.text()
    K = NAME + "_kernel"
    L = lds if lds else L_END
    out = HEADER + f"; @launch grid=(256,1,1) block=(512,1,1) lds={L}\n"
    out += f'.amdgcn_target "amdgcn-amd-amdhsa--gfx950"\n.text\n.globl {K}\n.p2align 8\n.type {K},@function\n{K}:\n'
    out += body
    out += "    .fill 2048, 4, 0xBF810000\n"
    out += f""".section .rodata,"a"
.p2align 6
.amdhsa_kernel {K}
  .amdhsa_next_free_vgpr 256
  .amdhsa_next_free_sgpr 102
  .amdhsa_accum_offset 256
  .amdhsa_group_segment_fixed_size 0
  .amdhsa_kernarg_size 96
  .amdhsa_user_sgpr_count 2
  .amdhsa_user_sgpr_kernarg_segment_ptr 1
  .amdhsa_system_sgpr_workgroup_id_x 1
.end_amdhsa_kernel
"""
    return out

if __name__ == "__main__":
    dst = sys.argv[1] if len(sys.argv) > 1 else f"cdna_kernels/{NAME}.s"
    kw = eval("dict(" + (sys.argv[2] if len(sys.argv) > 2 else "") + ")")
    open(dst, "w").write(gen(**kw))
```

```python
import sys
sys.path.insert(0, "gen")
from asmlib import Asm

NAME = "recurrent_scan__gqa_block_cached__glu_gated_geglu__decode"
HEADER = open("cdna_kernels/" + NAME + ".s.ref").read().split("; Override launch geometry")[0]

STR = 5376
O_OP, O_SD, O_GU, O_ML, O_QP = 0, 2048, 3072, 4864, 5120
STAMP_OFF = 128 << 20
FLG = 2 << 20
EPO = 3 << 20
L_RED = 0
L_Q = 2048
QSTR = 272
L_MLW = 4352
L_MLG = 4864
L_CNT = 4992
L_HRED = 5120
L_OW = 13312
OWH = 528; OWW = 8 * 528
L_ORED = L_OW + 8 * OWW
L_SW = L_ORED + 4096
L_GU = L_SW + 8192
L_END = L_GU + 2048

def gen(N=5, lay="g3^s0 g5^s2 g4^s1 w0 w1 w2 s0 s1 s2 g0 g1 g2 g6 g7", early=4, kp=52, kg=24, kq=34, vg=68, NR=12, relax=8, diag=False,
        pol="nt", lds=None, NW=12, stamps="start qpub Qrdy mlpub Prdy PVend hop1 end", spin=0, slp=8, slp_tail=4,
        touch=True, oracle=None, spinx=None, exp='', wbar=True, cw=0, fstr=4, inject=0.0):
    a = Asm()
    polk = polv = pol
    def contrib(pos):
        r = 1 << (12 + pos)
        if pos == 7: r |= 1 << 14
        if pos == 8: r |= 1 << 12
        if pos == 9: r |= 1 << 13
        return r
    con = {}
    assert len(lay.split()) == 14 and lay.split()[-2:] == ["g6", "g7"]
    for pos, t in enumerate(lay.split()):
        for b in t.split("^"): con[b] = con.get(b, 0) ^ contrib(pos)
    assert len(con) == 14
    basis = []
    for v in con.values():
        for b in basis: v = min(v, v ^ b)
        assert v, "layout not invertible"
        basis.append(v)
    def stepoff(s):
        r = 0
        for t, cval in con.items():
            if t[0] == 's' and (s >> int(t[1])) & 1: r ^= cval
        return r
    LANE, KOFF, VOFF, MW, XF = "v1", "v2", "v3", "v4", "v5"
    GOFF, FS = "v6", "v7"
    XA = 16
    Q = 24
    WT = 32
    WA = 64
    S = 96
    KV = 128
    def q4(b): return f"v[{b}:{b+3}]"
    def q2(b): return f"v[{b}:{b+1}]"
    sX, sK, sV, sWQ, sWO, sGU, sWD, sOUT, sDBG, sWS = (f"s[{28+4*i}:{31+4*i}]" for i in range(10))
    sKVB, sT, sG, sIDX, sHH, sCB, sPLO, sPHI, sMSK, sL2E, sSCL, sOWN = (f"s{68+i}" for i in range(12))
    sT2, sRETRY = "s100", "s101"
    sGUO, sOOB, sWOO, sWDO, sOPS, sOG0, sOG1, sSDG, sML, sH0, sH1, sQG = (f"s{4+i}" for i in range(12))
    sTAG = "s60"
    stl = stamps.split(); assert len(stl) == 8
    def stamp(name):
        if diag and name in stl:
            k = stl.index(name)
            a(f"s_memrealtime s[{84+2*k}:{85+2*k}]")
    def srd(dst, ptr, size):
        d = int(dst[2:dst.index(":")])
        a(f"s_mov_b32 s{d}, s{ptr}\ns_mov_b32 s{d+1}, s{ptr+1}\ns_mov_b32 s{d+2}, {size}\ns_mov_b32 s{d+3}, 0x20000")
    DPP = "row_mask:0xf bank_mask:0xf"
    def allreduce(v, op, tmp, steps=(1, 2, 4, 8), cross=True):
        for s in steps:
            a(f"{op}_dpp v{v}, v{v}, v{v} row_ror:{s} {DPP}")
        if cross:
            for sw in ("v_permlane16_swap_b32", "v_permlane32_swap_b32"):
                a(f"v_mov_b32 v{tmp}, v{v}\n{sw} v{v}, v{tmp}\n{op} v{v}, v{v}, v{tmp}")
    def unpack(lo, hi, src):
        a(f"v_lshlrev_b32 v{lo}, 16, v{src}\nv_and_b32 v{hi}, {sMSK}, v{src}")
    def gemv(acc, W, rng, X, t0, t1):
        for i in rng:
            for k in range(4):
                unpack(t0, t1, W + 4 * i + k)
                op = "v_mul_f32" if i == 0 else "v_fmac_f32"
                a(f"{op} v{acc+2*k}, v{t0}, v{X+i}\n{op} v{acc+2*k+1}, v{t1}, v{X+i}")
    def reduce8(acc):
        for e in range(4): a(f"v_permlane32_swap_b32 v{acc+e}, v{acc+e+4}")
        for e in range(4): a(f"v_add_f32 v{acc+e}, v{acc+e}, v{acc+e+4}")
        for e in range(2): a(f"v_permlane16_swap_b32 v{acc+e}, v{acc+e+2}")
        for e in range(2): a(f"v_add_f32 v{acc+e}, v{acc+e}, v{acc+e+2}")
        for e in range(2): a(f"v_add_f32_dpp v{acc+e}, v{acc+e}, v{acc+e} row_ror:8 {DPP}")
    lab = [0]
    def giveup(n): return f"s_add_u32 {sRETRY}, {sRETRY}, 1\ns_cmp_ge_u32 {sRETRY}, 200000\ns_cbranch_scc1 Lok{n}"
    def poll(loads, check, sleep):
        lab[0] += 1; n = lab[0]
        a(f"Lchk{n}:")
        a.hist = []
        check()
        a(f"s_cbranch_vccz Lok{n}")
        a(giveup(n) + f"\ns_sleep {sleep}")
        cv = a.count_vm; a.count_vm = False; a.count_vm7 = False
        a("s_mov_b64 exec, vcc")
        for l in loads: a(l)
        a("s_mov_b64 exec, -1")
        a.count_vm = cv; a.count_vm7 = True
        a(f"s_waitcnt vmcnt(0)\ns_branch Lchk{n}")
        a(f"Lok{n}:")
    def lds_wait(off, val, t):
        lab[0] += 1; n = lab[0]
        a(f"v_mov_b32 v{t+1}, 0")
        a(f"Lchk{n}:")
        a(f"ds_read_b32 v{t}, v{t+1} offset:{off}\ns_waitcnt lgkmcnt(0)\nv_cmp_ne_u32 vcc, {val}, v{t}\ns_cbranch_vccz Lok{n}")
        a(giveup(n) + f"\ns_sleep 1\ns_branch Lchk{n}")
        a(f"Lok{n}:")
    def lds_signal(off, t):
        a(f"v_mov_b32 v{t}, 0\nv_mov_b32 v{t+1}, 1\ns_mov_b64 exec, 1\nds_add_u32 v{t}, v{t+1} offset:{off}\ns_mov_b64 exec, -1")
    def chk_sent(regs, t):
        def f():
            r = list(regs); cur = r.pop(0)
            while r:
                if len(r) >= 2:
                    a(f"v_max3_u32 v{t}, v{cur}, v{r[0]}, v{r[1]}"); r = r[2:]
                else:
                    a(f"v_max_u32 v{t}, v{cur}, v{r[0]}"); r = r[1:]
                cur = t
            a(f"v_cmp_eq_u32 vcc, -1, v{cur}")
        return f
    def w7_begin():
        lab[0] += 1; n = lab[0]
        a(f"s_cmp_lg_u32 s3, 7\ns_cbranch_scc1 Lw7_{n}")
        a.count_vm = False
        return n
    def w7_end(n):
        a(f"s_nop 1\nLw7_{n}:")
        a.count_vm = True

    a("s_cmp_ge_u32 s2, 256\ns_cbranch_scc1 L_end")
    if diag:
        a.raw(f"; stamps: {stamps}")
        for k in range(8): a(f"s_mov_b64 s[{84+2*k}:{85+2*k}], 0")
    stamp("start")
    if spin: a("s_memrealtime s[84:85]")
    a("s_load_dwordx16 s[4:19], s[0:1], 0\ns_load_dwordx8 s[20:27], s[0:1], 64")
    a("s_getpc_b64 s[82:83]")
    a(f"v_lshrrev_b32 v8, 6, v0\nv_and_b32 {LANE}, 63, v0\nv_lshlrev_b32 v9, 7, v0")
    a("v_readfirstlane_b32 s3, v8")
    a("s_cmp_ge_u32 s3, 2")
    a("s_cbranch_scc1 L_nopf")
    a.count_vm = False; a.count_vm7 = False
    a("global_load_dword v255, v9, s[82:83]")
    a.count_vm = True; a.count_vm7 = True
    a("L_nopf:")
    a(f"s_add_u32 s3, s3, {7 - cw}\ns_and_b32 s3, s3, 7")
    a(f"s_lshr_b32 {sG}, s2, 6\ns_and_b32 {sIDX}, s2, 63")
    a(f"s_mov_b32 {sMSK}, 0xffff0000")
    a(f"v_lshlrev_b32 {VOFF}, 4, {LANE}")
    a(f"v_lshrrev_b32 v8, 3, {LANE}")
    a(f"v_and_b32 v9, 7, {LANE}")
    a(f"v_lshlrev_b32 v10, 5, {LANE}")
    a("v_lshlrev_b32 v11, 3, v8")
    a("v_lshlrev_b32 v12, 4, v8")
    a("v_lshlrev_b32 v13, 15, v8\nv_lshl_add_u32 v13, v9, 4, v13")
    a(f"s_and_b32 {sT}, {sIDX}, 3\ns_lshl_b32 {sT}, {sT}, 8\ns_lshl_b32 {sT2}, s3, 5\ns_add_u32 {sT}, {sT}, {sT2}")
    a(f"s_lshl_b32 s80, {sT}, 1")
    a(f"s_lshl_b32 {sT}, {sT}, 13\ns_lshr_b32 {sT2}, s2, 2\ns_lshl_b32 {sT2}, {sT2}, 7\ns_add_u32 {sT}, {sT}, {sT2}")
    a("s_and_b32 s81, s2, 15\ns_lshl_b32 s81, s81, 7")
    a("s_waitcnt lgkmcnt(0)")
    a(f"s_add_u32 s62, s26, {EPO}\ns_addc_u32 s63, s27, 0\ns_load_dword {sTAG}, s[62:63], 0")
    srd(sX, 4, 2048)
    srd(sWQ, 10, 8 << 20)
    a.vmem(f"buffer_load_dwordx4 {q4(S)}, v10, {sX}, 0 offen")
    a.vmem(f"buffer_load_dwordx4 {q4(S+4)}, v10, {sX}, 0 offen offset:16")
    a.vmem(f"buffer_load_dwordx2 {q2(S+8)}, v11, {sX}, s80 offen")
    txa = a.vmem(f"buffer_load_dwordx4 {q4(S+12)}, v12, {sX}, s81 offen")
    twq = []
    for i in range(4):
        twq.append(a.vmem(f"buffer_load_dwordx4 {q4(WT+4*i)}, v13, {sWQ}, {sT} offen {pol}"))
        if i < 3: a(f"s_add_u32 {sT}, {sT}, 8192")
    a(f"v_and_b32 v10, 1, {LANE}\nv_lshlrev_b32 v10, 2, v10\nv_lshrrev_b32 v11, 5, {LANE}\nv_lshl_add_u32 v10, v11, 1, v10")
    a(f"s_lshl_b32 {sT}, s2, 3")
    a.vmem(f"buffer_load_ushort {XF}, v10, {sX}, {sT} offen")
    a("s_cmp_ge_u32 s2, 128\ns_cselect_b32 s48, s18, s16\ns_cselect_b32 s49, s19, s17")
    a(f"s_mov_b32 s50, {7<<20}\ns_mov_b32 s51, 0x20000")
    a(f"v_mul_u32_u24 {GOFF}, {8*7168}, v8\nv_lshl_add_u32 {GOFF}, v9, 4, {GOFF}")
    a(f"s_and_b32 {sGUO}, s2, 15\ns_mul_i32 {sGUO}, {sGUO}, {64*7168}\ns_bfe_u32 s80, s2, 0x30004\ns_mul_i32 s80, s80, 896\ns_add_u32 {sGUO}, {sGUO}, s80")
    a(f"s_lshl_b32 s80, s3, 7\ns_add_u32 {sGUO}, {sGUO}, s80")
    tk = {}
    sKS = "s83"
    PK, PV_, PW = 8, 40, 72
    def issue(p, depth):
        if p < PK:
            if p: a(f"s_add_u32 {sGUO}, {sGUO}, 7168")
            ins = f"buffer_load_dwordx4 {q4(WA+4*p)}, {GOFF}, {sGU}, {sGUO} offen {pol}"
        elif p < PV_:
            i = p - PK; t, qd = divmod(i, 4)
            if qd == 0: a(f"s_xor_b32 {sKS}, {sKVB}, {stepoff(t) ^ (((oracle[0] & 2) << 12) if oracle else 0)}")
            ins = f"buffer_load_dwordx4 {q4(KV+4*i)}, {KOFF}, {sK}, {sKS} offen offset:{(qd>>1)*512 + (qd&1)*128} {polk}"
        elif p < PW:
            i = p - PV_; t, qd = divmod(i, 4)
            if qd == 0: a(f"s_xor_b32 {sKS}, {sKVB}, {stepoff(t) ^ (((oracle[1] & 2) << 12) if oracle else 0)}")
            ins = f"buffer_load_dwordx4 {q4(KV+4*i)}, {VOFF}, {sV}, {sKS} offen offset:{qd*1024} {polv}"
        elif p < 76:
            i = p - 72
            if i == 0 and wbar: a("s_barrier")
            if i == 2: a(f"s_add_u32 {sWDO}, {sWDO}, 4096")
            ins = f"buffer_load_dwordx4 {q4(WT+16+4*i)}, v15, {sWD}, {sWDO} offen offset:{(i&1)*2048} {pol}"
        else:
            i = p - 76
            if i: a(f"s_add_u32 {sWOO}, {sWOO}, 16384")
            ins = f"buffer_load_dwordx4 {q4(WT+4*i)}, v14, {sWO}, {sWOO} offen {pol}"
        if depth == "w7free":
            lab[0] += 1
            a(f"s_cmp_eq_u32 s3, 7\ns_cbranch_scc1 Lfr{lab[0]}")
            a.wait_vm(tk[p - N])
            a(f"Lfr{lab[0]}:")
        elif depth: a.wait_vm(tk[p - depth])
        tk[p] = a.vmem(ins)
    a("s_barrier")
    srd(sWS, 26, 256 << 20)
    a(f"s_mul_i32 {sOWN}, s2, {STR}")
    a("s_cmp_eq_u32 s3, 7\ns_cbranch_scc1 L_nogu")
    a.count_vm7 = False
    for p in range(early): issue(p, 0)
    a.count_vm7 = True
    a("L_nogu:")
    srd(sK, 6, 64 << 20)
    a(f"s_mov_b32 {sKVB}, 0")
    if oracle: a("s_getreg_b32 s80, hwreg(HW_REG_XCC_ID)")
    for t, cval in con.items():
        if t[0] in 'gwx':
            src = {'g': 's2', 'w': 's3', 'x': 's80'}[t[0]]
            a(f"s_bfe_u32 {sT}, {src}, {(1<<16) | int(t[1])}\ns_mul_i32 {sT}, {sT}, {cval}\ns_xor_b32 {sKVB}, {sKVB}, {sT}")
    srd(sV, 8, 64 << 20)
    srd(sWO, 12, 8 << 20)
    srd(sWD, 20, 7 << 20)
    srd(sOUT, 22, 2048)
    a(f"s_and_b32 {sHH}, s2, 7\ns_lshl_b32 {sHH}, {sHH}, 2\ns_bfe_u32 {sT}, s2, 0x20003\ns_add_u32 {sHH}, {sHH}, {sT}")
    a(f"s_lshr_b32 {sCB}, s2, 5")
    a(f"s_and_b32 s80, s3, 1\ns_lshl_b32 s80, s80, 6\ns_lshr_b32 s81, s3, 1\ns_add_u32 s80, s80, s81\ns_lshl_b32 s81, {sHH}, 7\ns_add_u32 s80, s80, s81")
    a(f"s_lshl_b32 s80, s80, 11\ns_lshl_b32 s81, {sCB}, 8\ns_add_u32 {sWOO}, s80, s81")
    a(f"s_mul_i32 s80, {sHH}, 112\ns_lshl_b32 s82, s3, 4\ns_add_u32 s80, s80, s82\ns_lshl_b32 s80, s80, 11\ns_add_u32 {sWDO}, s81, s80")

    a("s_cmp_lg_u32 s3, 7\ns_cbranch_scc1 L_gu_done")
    a.count_vm = False
    if touch:
        a("s_mov_b64 exec, 1")
        for sr, so in ((sK, sKVB), (sV, sKVB), (sWO, sWOO), (sWD, sWDO), (sOUT, "0")):
            a(f"buffer_load_dword v{WA+4}, off, {sr}, {so}")
        a("s_mov_b64 exec, -1")
    for k in range(4): a(f"v_mov_b32 v{WA+k}, -1")
    for i in range(4):
        a(f"buffer_store_dwordx4 {q4(WA)}, {VOFF}, {sWS}, {sOWN} offen offset:{1024*i} sc1")
    a(f"s_add_u32 {sT}, {sOWN}, 4096")
    a(f"buffer_store_dwordx4 {q4(WA)}, {VOFF}, {sWS}, {sT} offen sc1")
    a.count_vm = True
    a("L_gu_done:")
    a(f"v_and_b32 {KOFF}, 3, {LANE}\nv_lshlrev_b32 {KOFF}, 10, {KOFF}")
    a(f"v_bfe_u32 v10, {LANE}, 2, 1\nv_lshl_add_u32 {KOFF}, v10, 8, {KOFF}")
    a(f"v_bfe_u32 v10, {LANE}, 3, 1\nv_lshl_add_u32 {KOFF}, v10, 6, {KOFF}")
    a(f"v_lshrrev_b32 v10, 4, {LANE}\nv_lshl_add_u32 {KOFF}, v10, 4, {KOFF}")
    a(f"s_mov_b32 {sPLO}, 0x05040100\ns_mov_b32 {sPHI}, 0x07060302\ns_mov_b32 {sL2E}, 0x3fb8aa3b\ns_mov_b32 {sSCL}, 0x3db504f3")
    a(f"s_mov_b32 {sRETRY}, 0")
    a(f"v_mov_b32 v10, 0\nv_mov_b32 v11, 0\nds_write_b64 v10, v[10:11] offset:{L_CNT}\nds_write_b64 v10, v[10:11] offset:{L_CNT+8}")
    a(f"s_cmp_eq_u32 s3, 7\ns_cselect_b32 {sOOB}, 0x40000000, 0")
    def wait_early(t, t7):
        n, n7 = a.vm - t, a.vm7 - t7
        lab[0] += 1
        a(f"s_waitcnt vmcnt({max(n, n7)})")
        if n != n7:
            a(f"s_cmp_{'eq' if n < n7 else 'lg'}_u32 s3, 7\ns_cbranch_scc1 Lwe{lab[0]}\ns_waitcnt vmcnt({min(n, n7)})\nLwe{lab[0]}:")
    wait_early(txa, txa)
    stamp("xarr")
    X = S + 16
    for i in range(8): unpack(X + 2 * i, X + 2 * i + 1, S + i)
    a(f"v_add_f32 v8, v{X}, v{X+1}\nv_add_f32 v9, v{X+2}, v{X+3}")
    for i in range(4, 16, 2): a(f"v_add_f32 v8, v8, v{X+i}\nv_add_f32 v9, v9, v{X+i+1}")
    a("v_add_f32 v8, v8, v9")
    allreduce(8, "v_add_f32", 9)
    a("v_mul_f32 v8, 0x3a800000, v8")
    for i in range(16): a(f"v_sub_f32 v{X+i}, v{X+i}, v8")
    a(f"v_mul_f32 v10, v{X}, v{X}\nv_mul_f32 v9, v{X+1}, v{X+1}")
    for i in range(2, 16, 2): a(f"v_fmac_f32 v10, v{X+i}, v{X+i}\nv_fmac_f32 v9, v{X+i+1}, v{X+i+1}")
    a("v_add_f32 v10, v10, v9")
    allreduce(10, "v_add_f32", 9)
    a("v_mul_f32 v10, 0x3a800000, v10")
    a("v_cvt_pk_bf16_f32 v9, v8, v10")
    unpack(8, 10, 9)
    a("v_add_f32 v10, 0x3727c5ac, v10\nv_cvt_pk_bf16_f32 v10, v10, v10\nv_lshlrev_b32 v10, 16, v10")
    a("v_sqrt_f32 v10, v10\nv_cvt_pk_bf16_f32 v10, v10, v10\nv_lshlrev_b32 v10, 16, v10\nv_rcp_f32 v10, v10")
    def normalize(lo, src):
        hi = lo + 1
        unpack(lo, hi, src)
        a(f"v_sub_f32 v{lo}, v{lo}, v8\nv_sub_f32 v{hi}, v{hi}, v8\nv_cvt_pk_bf16_f32 v9, v{lo}, v{hi}")
        unpack(lo, hi, 9)
        a(f"v_mul_f32 v{lo}, v{lo}, v10\nv_mul_f32 v{hi}, v{hi}, v10\nv_cvt_pk_bf16_f32 v9, v{lo}, v{hi}")
        unpack(lo, hi, 9)
    XQ = X
    for i in range(2): normalize(XQ + 2 * i, S + 8 + i)
    QA = WT + 16
    for i in range(4):
        wait_early(twq[i], twq[i])
        gemv(QA, WT, [i], XQ, 11, 9)
    stamp("wqarr")
    reduce8(QA)
    a(f"v_and_b32 v11, 7, {LANE}\nv_lshlrev_b32 v11, 5, v11\nv_lshrrev_b32 v9, 4, {LANE}\nv_lshl_add_u32 v13, v9, 3, v11")
    a(f"s_lshl_b32 {sT}, s3, 8\nv_add_u32 v11, {sT}, v13")
    a(f"ds_write_b64 v11, {q2(QA)} offset:{L_RED}")
    if early < 8:
        a("s_cmp_eq_u32 s3, 7\ns_cbranch_scc1 L_nogu2")
        a.count_vm7 = False
        for p in range(early, 8): issue(p, 0)
        a.count_vm7 = True
        a("s_branch L_gu2_done\nL_nogu2:\ns_waitcnt vmcnt(0)\nL_gu2_done:")
    a("s_waitcnt lgkmcnt(0)\ns_barrier")
    stamp("B1")
    a(f"s_add_u32 {sTAG}, {sTAG}, 1")
    n7 = w7_begin()
    a("s_mov_b64 exec, 0xffff")
    for w in range(8): a(f"ds_read_b128 {q4(WT+4*w)}, {VOFF} offset:{L_RED+256*w}")
    a(f"s_mul_i32 s80, s2, {fstr}\ns_add_u32 s80, s80, {FLG}\ns_add_u32 {sT}, {sOWN}, 4096")
    a(f"v_mov_b32 v11, {sTAG}")
    a("s_waitcnt lgkmcnt(0)")
    for st in (16, 8, 4):
        for k in range(st): a(f"v_add_f32 v{WT+k}, v{WT+k}, v{WT+st+k}")
    for k in range(4):
        a(f"s_mov_b32 s81, {0x07060500 + k}\nv_perm_b32 v{WT+16+k}, v{WT+k}, v11, s81")
    a(f"buffer_store_dwordx4 {q4(WT+16)}, {VOFF}, {sWS}, {sT} offen offset:{O_QP-4096} sc1")
    a("s_mov_b64 exec, 1")
    a(f"buffer_store_dword v11, off, {sWS}, s80 sc1")
    a("s_mov_b64 exec, -1")
    stamp("qpub")
    w7_end(n7)
    for i in range(4): normalize(XA + 2 * i, S + 12 + i)

    at = {}
    def sched(p, f):
        nm = getattr(f, "__qualname__", "")
        if exp:
            keep = exp.split()
            if not any(k in nm for k in keep): return
        at.setdefault(p, []).append(f)
    st7 = {}
    PF = WT + 12
    if fstr == 4: pl = [f"buffer_load_dwordx4 {q4(PF)}, {VOFF}, {sWS}, s82 offen sc1"]
    else: pl = [f"buffer_load_dword v{PF+k}, v11, {sWS}, s82 offen offset:{k*fstr} sc1" for k in range(4)]
    def c_poll_issue():
        n = w7_begin()
        a(f"s_mov_b32 s82, {FLG}\nv_mul_u32_u24 v11, {4*fstr}, {LANE}")
        for l in pl: a(l)
        st7["poll"] = a.vm7
        w7_end(n)
    def c_poll_check():
        n = w7_begin()
        stamp("prepoll")
        a.wait_vm7(st7["poll"])
        def chk():
            for k in range(4): a(f"v_xor_b32 v{8+(k>0)}, {sTAG}, v{PF+k}" + ("\nv_or_b32 v8, v8, v9" if k else ""))
            a("v_cmp_ne_u32 vcc, 0, v8")
        poll(pl, chk, slp)
        stamp("pollok")
        lds_signal(L_CNT + 12, 8)
        w7_end(n)
    ql = [f"buffer_load_dwordx4 {q4(S+4*t)}, v10, {sWS}, s{16+t} offen sc1" for t in range(2)]
    def c_qg_issue():
        a(f"v_bfe_u32 v8, {LANE}, 4, 1\nv_lshrrev_b32 v9, 5, {LANE}\nv_lshl_add_u32 v8, v8, 2, v9\nv_mul_u32_u24 v8, {STR}, v8")
        a(f"v_and_b32 v9, 15, {LANE}\nv_lshl_add_u32 v10, v9, 4, v8")
        a(f"s_lshl_b32 s16, {sG}, 3\ns_add_u32 s16, s16, s3\ns_mul_i32 s16, s16, {8*STR}\ns_add_u32 s16, s16, {O_QP}\ns_add_u32 s17, s16, {2*STR}")
        for l in ql: tk["q"] = a.vmem(l)
    def c_qg_use():
        a("s_mov_b32 s80, 0x0c0c0400")
        stamp("preF")
        a.wait_vm(tk["q"])
        def chk():
            for t in range(2):
                b = S + 4 * t
                a(f"v_perm_b32 v8, v{b+1}, v{b}, s80\nv_perm_b32 v9, v{b+3}, v{b+2}, s80\nv_lshl_or_b32 v{11+t}, v9, 16, v8")
            a(f"v_xor_b32 v11, {sTAG}, v11\nv_xor_b32 v12, {sTAG}, v12\nv_or_b32 v11, v11, v12\nv_cmp_ne_u32 vcc, 0, v11")
        poll(ql, chk, slp)
        stamp("Fok")
        a(f"v_and_b32 v9, 31, {LANE}\nv_lshlrev_b32 v9, 3, v9\ns_mul_i32 s80, s3, {QSTR}\nv_add_u32 v10, s80, v9")
        a("s_movk_i32 s81, 0xff00")
        a("v_mov_b32 v8, 0x80")
        for k in range(8): a(f"v_and_or_b32 v{S+k}, v{S+k}, s81, v8")
        for k in range(4): a(f"v_add_f32 v{S+k}, v{S+k}, v{S+4+k}")
        for k in range(4): a(f"v_mov_b32 v{S+4+k}, v{S+k}")
        for k in range(4): a(f"v_permlane32_swap_b32 v{S+k}, v{S+4+k}")
        for k in range(4): a(f"v_add_f32 v{S+k}, v{S+k}, v{S+4+k}")
        a(f"v_cvt_pk_bf16_f32 v{S}, v{S}, v{S+1}\nv_cvt_pk_bf16_f32 v{S+1}, v{S+2}, v{S+3}")
        a(f"ds_write_b64 v10, {q2(S)} offset:{L_Q}")
        lds_signal(L_CNT, 8)
    def c_readq():
        a(f"v_and_b32 v10, 7, {LANE}\nv_mul_u32_u24 v10, {QSTR}, v10\nv_bfe_u32 v11, {LANE}, 3, 1\nv_lshl_add_u32 v10, v11, 6, v10\nv_lshrrev_b32 v11, 4, {LANE}\nv_lshl_add_u32 v10, v11, 4, v10")
        stamp("preQ")
        lds_wait(L_CNT, 8, 8)
        a(f"ds_read_b128 {q4(Q)}, v10 offset:{L_Q}\nds_read_b128 {q4(Q+4)}, v10 offset:{L_Q+128}")
        a("s_waitcnt lgkmcnt(0)")
        stamp("Qrdy")
    ACC = WT
    def c_qk(t):
        def f():
            b = KV + 16 * t; c = ACC; s = S + 4 * t
            a.wait_vm(tk[PK + 4 * t + 3])
            a(f"v_mfma_f32_16x16x32_bf16 {q4(c)}, {q4(b)}, {q4(Q)}, 0")
            a(f"v_mfma_f32_16x16x32_bf16 {q4(c+4)}, {q4(b+8)}, {q4(Q)}, 0")
            a(f"v_mfma_f32_16x16x32_bf16 {q4(c)}, {q4(b+4)}, {q4(Q+4)}, {q4(c)}")
            a(f"v_mfma_f32_16x16x32_bf16 {q4(c+4)}, {q4(b+12)}, {q4(Q+4)}, {q4(c+4)}")
            for i in range(4): a(f"v_permlane32_swap_b32 v{c+i}, v{c+4+i}")
            for i in range(4): a(f"v_add_f32_dpp v{c+i}, v{c+4+i}, v{c+i} row_ror:8 {DPP}")
            for i in (0, 2): a(f"v_cvt_pk_bf16_f32 v{c+4+i}, v{c+i}, v{c+i+1}")
            for i in (0, 2): unpack(c + i, c + i + 1, c + 4 + i)
            for i in range(4): a(f"v_mul_f32 v{c+i}, {sSCL}, v{c+i}")
            for i in (0, 2): a(f"v_cvt_pk_bf16_f32 v{c+4+i}, v{c+i}, v{c+i+1}")
            for i in (0, 2): unpack(s + i, s + i + 1, c + 4 + i)
            if t == 0: a(f"v_max_f32 {MW}, v{s}, v{s+1}")
            else: a(f"v_max3_f32 {MW}, {MW}, v{s}, v{s+1}")
            a(f"v_max3_f32 {MW}, {MW}, v{s+2}, v{s+3}")
        return f
    mw = int(MW[1:])
    def c_exp(part):
        def f():
            if part == 0:
                allreduce(mw, "v_max_f32", 9, steps=())
                a(f"v_mul_f32 v12, {sL2E}, {MW}")
            for i in range(8 * part, 8 * part + 8): a(f"v_fma_f32 v{S+i}, v{S+i}, {sL2E}, -v12")
            for i in range(8 * part, 8 * part + 8): a(f"v_exp_f32 v{S+i}, v{S+i}")
            for i in range(8 * part, 8 * part + 8, 2):
                if i == 0: a(f"v_add_f32 v11, v{S}, v{S+1}")
                else: a(f"v_add_f32 v9, v{S+i}, v{S+i+1}\nv_add_f32 v11, v11, v9")
                a(f"v_cvt_pk_bf16_f32 v{S+i//2}, v{S+i}, v{S+i+1}")
            if part == 3:
                allreduce(11, "v_add_f32", 9, steps=())
                a(f"v_mov_b32 v10, {MW}")
                a(f"v_lshlrev_b32 v8, 3, {LANE}\ns_lshl_b32 s80, s3, 6\nv_add_u32 v9, s80, v8")
                a(f"s_mov_b64 exec, 0xff\nds_write_b64 v9, v[10:11] offset:{L_MLW}\ns_mov_b64 exec, -1")
                lds_signal(L_CNT + 4, 8)
                stamp("Prdy")
        return f
    def c_el():
        lds_wait(L_CNT + 4, 8, 8)
        a(f"v_lshlrev_b32 v8, 3, {LANE}")
        a(f"ds_read_b64 v[10:11], v8 offset:{L_MLW}\ns_waitcnt lgkmcnt(0)")
        a(f"v_mul_f32 v10, {sL2E}, v10\nv_ceil_f32 v{WT+8}, v10")
        allreduce(WT + 8, "v_max_f32", 9, steps=(8,))
        a(f"v_sub_f32 v10, v10, v{WT+8}\nv_exp_f32 v10, v10\nv_mul_f32 v{WT+9}, v10, v11")
        allreduce(WT + 9, "v_add_f32", 9, steps=(8,))
        a(f"v_mov_b32_dpp {MW}, {MW} row_ror:8 row_mask:0xf bank_mask:0xc")
        a(f"v_mul_f32 v10, {sL2E}, {MW}\nv_sub_f32 v10, v10, v{WT+8}\nv_exp_f32 {FS}, v10")
        n = w7_begin()
        a(f"v_min_u32 v{WT+8}, -2, v{WT+8}\nv_min_u32 v{WT+9}, -2, v{WT+9}")
        a(f"s_add_u32 {sT}, {sOWN}, {O_ML}\ns_mov_b64 exec, 0xff")
        a(f"buffer_store_dwordx2 {q2(WT+8)}, v8, {sWS}, {sT} offen sc1")
        a("s_mov_b64 exec, -1")
        stamp("mlpub")
        w7_end(n)
    GA = WT
    def c_gu(part):
        def f():
            a(f"s_cmp_eq_u32 s3, 7\ns_cbranch_scc1 Lgus{part}")
            if part < 4:
                a.wait_vm(tk[2 * part + 1])
                if part == 3: stamp("guarr")
                gemv(GA, WA, [2 * part, 2 * part + 1], XA, 8, 9)
            else:
                reduce8(GA)
                a(f"s_lshl_b32 {sT}, s3, 8\nv_add_u32 v8, {sT}, v13")
                a(f"ds_write_b64 v8, {q2(GA)} offset:{L_GU}")
                lds_signal(L_CNT + 8, 8)
            a(f"Lgus{part}:")
        return f
    def c_gupub():
        n = w7_begin()
        lds_wait(L_CNT + 8, 7, 8)
        a(f"ds_read_b128 {q4(WT+16)}, {VOFF} offset:{L_GU}\nds_read_b128 {q4(WT+20)}, {VOFF} offset:{L_GU+1024}")
        a(f"s_add_u32 {sT}, {sOWN}, 1024\ns_waitcnt lgkmcnt(0)")
        for k in range(8): a(f"v_min_u32 v{WT+16+k}, -2, v{WT+16+k}")
        a(f"buffer_store_dwordx4 {q4(WT+16)}, {VOFF}, {sWS}, {sOWN} offen offset:{O_GU} sc1")
        a("s_mov_b32 exec_hi, 0xffff")
        a(f"buffer_store_dwordx4 {q4(WT+20)}, {VOFF}, {sWS}, {sT} offen offset:{O_GU} sc1")
        a("s_mov_b64 exec, -1")
        stamp("gupub")
        w7_end(n)
    G = KV
    SEL = Q + 4
    gl = [f"buffer_load_dwordx2 {q2(G+8)}, v12, {sWS}, {sML} offen sc1",
          f"buffer_load_dwordx2 {q2(G+10)}, v12, {sWS}, {sQG} offen sc1",
          f"buffer_load_dwordx4 {q4(G)}, v13, {sWS}, {sH0} offen offset:{O_GU} sc1",
          f"buffer_load_dwordx4 {q4(G+4)}, v13, {sWS}, {sH1} offen offset:{O_GU} sc1"]
    def c_g_issue():
        a(f"v_lshrrev_b32 v12, 4, {LANE}\nv_mul_u32_u24 v12, {STR}, v12")
        a(f"s_and_b32 {sT}, {sHH}, 7\ns_mul_i32 {sT}, {sT}, 248\ns_sub_u32 {sML}, {sOG0}, {sT}\ns_add_u32 {sML}, {sML}, {O_ML}\ns_add_u32 {sQG}, {sML}, {4*STR}")
        a(f"v_lshrrev_b32 v8, 5, {LANE}\nv_mul_u32_u24 v8, {STR}, v8\nv_and_b32 v9, 31, {LANE}\nv_lshl_add_u32 v13, v9, 4, v8")
        a("v_cmp_lt_u32 vcc, 27, v9\nv_mov_b32 v8, 0x40000000\nv_cndmask_b32 v13, v13, v8, vcc")
        a(f"s_lshr_b32 {sH0}, {sHH}, 2\ns_lshl_b32 {sH0}, {sH0}, 3\ns_add_u32 {sH0}, {sH0}, s3\ns_mul_i32 {sH0}, {sH0}, {2*STR}")
        a(f"s_and_b32 {sT}, {sHH}, 3\ns_mul_i32 {sT}, {sT}, 448\ns_add_u32 {sH0}, {sH0}, {sT}\ns_add_u32 {sH1}, {sH0}, {128*STR}")
        lds_wait(L_CNT + 12, 1, 8)
        for l in gl: tk["g"] = a.vmem(l)
    def c_g_use():
        stamp("preg")
        a.wait_vm(tk["g"])
        poll(gl, chk_sent(range(G, G + 12), 8), slp)
        stamp("gok")
        a(f"v_max_f32 v10, v{G+8}, v{G+10}")
        allreduce(10, "v_max_f32", 9, steps=())
        a(f"v_sub_f32 v8, v{G+8}, v10\nv_sub_f32 v9, v{G+10}, v10\nv_exp_f32 v8, v8\nv_exp_f32 v9, v9\nv_mul_f32 v11, v8, v{G+9}\nv_fmac_f32 v11, v9, v{G+11}")
        allreduce(11, "v_add_f32", 9, steps=())
        a(f"s_lshl_b32 s80, s3, 3\nv_mov_b32 v8, s80")
        a(f"ds_write_b64 v8, v[10:11] offset:{L_MLG}")
        for k in range(4): a(f"v_permlane32_swap_b32 v{G+k}, v{G+4+k}")
        for k in range(4): a(f"v_add_f32 v{G+k}, v{G+k}, v{G+4+k}")
        a(f"s_lshl_b32 s80, s3, 10\nv_add_u32 v8, s80, {VOFF}")
        a(f"ds_write_b128 v8, {q4(G)} offset:{L_HRED}")
    AO = Q
    A1 = KV + 16
    INVL = KV + 24
    def c_wts():
        a(f"v_and_b32 v12, 7, {LANE}\nv_lshlrev_b32 v13, 3, v12")
        a(f"v_lshlrev_b32 v12, 10, v12\nv_bfe_u32 v9, {LANE}, 3, 1\nv_lshl_add_u32 v12, v9, 9, v12\nv_lshrrev_b32 v9, 4, {LANE}\nv_lshl_add_u32 v12, v9, 4, v12")
        a(f"s_lshl_b32 s80, s3, 6\nv_add_u32 v12, s80, v12")
        a(f"ds_read_b64 v[10:11], v13 offset:{L_MLG}\nds_read_b128 {q4(G)}, v12 offset:{L_HRED}\ns_waitcnt lgkmcnt(0)")
        a("v_mov_b32 v12, v10")
        for m in ("quad_perm:[1,0,3,2]", "quad_perm:[2,3,0,1]", "row_half_mirror"): a(f"v_max_f32_dpp v12, v12, v12 {m} {DPP}")
        a("v_sub_f32 v10, v10, v12\nv_exp_f32 v10, v10\nv_mul_f32 v11, v10, v11")
        for m in ("quad_perm:[1,0,3,2]", "quad_perm:[2,3,0,1]", "row_half_mirror"): a(f"v_add_f32_dpp v11, v11, v11 {m} {DPP}")
        a(f"v_rcp_f32 v{INVL}, v11")
        for t in range(2):
            a(f"v_sub_f32 v8, v{G+8+2*t}, v12\nv_exp_f32 v8, v8\nv_cvt_pk_bf16_f32 v8, v8, v8")
            for k in range(4): a(f"v_and_b32 v{A1+4*t+k}, v8, v{SEL+k}")
    def c_h():
        for m in ("quad_perm:[1,0,3,2]", "quad_perm:[2,3,0,1]", "row_half_mirror"):
            for k in range(4): a(f"v_add_f32_dpp v{G+k}, v{G+k}, v{G+k} {m} {DPP}")
        for i in (0, 2): a(f"v_cvt_pk_bf16_f32 v{G+4+i}, v{G+i}, v{G+i+1}")
        for i in (0, 2): unpack(G + i, G + i + 1, G + 4 + i)
        for k in range(4): a(f"v_mov_b32_dpp v{G+4+k}, v{G+k} row_ror:8 {DPP}")
    def c_h2():
        a("s_mov_b32 s80, 0x3d372713\ns_mov_b32 s81, 0xc0135761")
        for k in range(4): a(f"v_mul_f32 v{G+8+k}, v{G+k}, v{G+k}")
        for k in range(4): a(f"v_fma_f32 v{G+8+k}, v{G+8+k}, s80, 1.0")
        for k in range(4): a(f"v_mul_f32 v{G+8+k}, v{G+8+k}, v{G+k}")
        for k in range(4): a(f"v_mul_f32 v{G+8+k}, s81, v{G+8+k}")
        for k in range(4): a(f"v_exp_f32 v{G+8+k}, v{G+8+k}")
        for k in range(4): a(f"v_add_f32 v{G+8+k}, 1.0, v{G+8+k}")
        for k in range(4): a(f"v_rcp_f32 v{G+8+k}, v{G+8+k}")
        for k in range(4): a(f"v_mul_f32 v{G+k}, v{G+k}, v{G+8+k}")
        for i in (0, 2): a(f"v_cvt_pk_bf16_f32 v{G+8+i}, v{G+i}, v{G+i+1}")
        for i in (0, 2): unpack(G + i, G + i + 1, G + 8 + i)
        for k in range(4): a(f"v_mul_f32 v{G+k}, v{G+k}, v{G+4+k}")
        for k in range(4): a(f"v_mov_b32 v{AO+k}, 0")
        a("s_mov_b32 exec_lo, 0x00020002\ns_mov_b32 exec_hi, 0x00020002")
        a(f"v_cvt_pk_bf16_f32 v{AO+2}, v{G}, v{G+1}\nv_cvt_pk_bf16_f32 v{AO+3}, v{G+2}, v{G+3}")
        a("s_mov_b64 exec, -1")
        stamp("hrdy")
    VT = S + 16
    def transp(dst, b, e, nq=4):
        sel = sPHI if e & 1 else sPLO
        for t in range(nq):
            a(f"v_perm_b32 v{dst+t}, v{b+8*t+4+(e>>1)}, v{b+8*t+(e>>1)}, {sel}")
    def c_pv(tau):
        def f():
            b = KV + 32 * tau
            a.wait_vm(tk[40 + 8 * tau + 7])
            if tau == 3: stamp("Vend")
            transp(VT, b, 0)
            for e in range(8):
                if e < 7: transp(VT + 4 * ((e + 1) & 1), b, e + 1)
                c = q4(WA + 4 * e) if tau else "0"
                a(f"v_mfma_f32_16x16x32_bf16 {q4(WA+4*e)}, {q4(VT+4*(e&1))}, {q4(S+4*tau)}, {c}")
        return f
    def c_addr1():
        a(f"v_lshrrev_b32 v8, 5, {LANE}\nv_lshlrev_b32 v8, 16, v8\nv_bfe_u32 v9, {LANE}, 4, 1\nv_lshl_add_u32 v8, v9, 13, v8")
        a(f"v_and_b32 v9, 15, {LANE}\nv_lshl_add_u32 v14, v9, 4, v8")
        a(f"v_lshrrev_b32 v8, 4, {LANE}\nv_lshlrev_b32 v8, 13, v8\nv_lshl_add_u32 v15, v9, 4, v8\nv_add_u32 v15, {sOOB}, v15")
        a(f"v_and_b32 v8, 7, {LANE}\nv_mul_u32_u24 v8, {OWH}, v8\nv_lshrrev_b32 v9, 3, {LANE}\nv_lshl_add_u32 v8, v9, 4, v8\ns_mul_i32 s80, s3, {OWW}\nv_add_u32 v16, s80, v8")
        a(f"s_mul_i32 s80, s3, {OWH}\nv_lshlrev_b32 v17, 3, {LANE}\nv_add_u32 v17, s80, v17")
        a(f"v_lshlrev_b32 v18, 2, {LANE}")
        a(f"s_lshl_b32 {sOPS}, s3, 8\ns_add_u32 {sOPS}, {sOPS}, {sOWN}")
        a(f"v_lshrrev_b32 v8, 4, {LANE}\nv_mul_u32_u24 v8, {STR}, v8\nv_and_b32 v9, 15, {LANE}\nv_lshl_add_u32 v19, v9, 4, v8")
        a(f"s_lshr_b32 {sOG0}, {sHH}, 3\ns_lshl_b32 {sOG0}, {sOG0}, 3\ns_add_u32 {sOG0}, {sOG0}, s3\ns_mul_i32 {sOG0}, {sOG0}, {8*STR}\ns_and_b32 s80, {sHH}, 7\ns_lshl_b32 s80, s80, 8\ns_add_u32 {sOG0}, {sOG0}, s80")
        a(f"s_add_u32 {sOG1}, {sOG0}, {4*STR}")
    def c_addr2():
        a(f"v_and_b32 v8, 1, {LANE}\nv_lshlrev_b32 v8, 4, v8\nv_mov_b32 v9, 0xffff\nv_lshlrev_b32 v9, v8, v9\nv_bfe_u32 v8, {LANE}, 1, 2")
        for k in range(4):
            a(f"v_cmp_eq_u32 vcc, {k}, v8\nv_cndmask_b32 v{SEL+k}, 0, v9, vcc")
        a(f"v_and_b32 v8, 15, {LANE}\nv_lshlrev_b32 v20, 5, v8\nv_bfe_u32 v9, {LANE}, 4, 1\nv_lshl_add_u32 v20, v9, 4, v20\ns_lshl_b32 s80, s3, 9\nv_add_u32 v20, s80, v20")
        a(f"v_and_b32 v9, 7, {LANE}\nv_lshlrev_b32 v21, 9, v9\nv_lshrrev_b32 v9, 4, {LANE}\nv_lshl_add_u32 v21, v9, 4, v21\ns_lshl_b32 s80, s3, 6\nv_add_u32 v21, s80, v21")
        a(f"v_lshlrev_b32 v22, 6, v8\ns_lshl_b32 s80, s3, 10\nv_add_u32 v22, s80, v22")
        a(f"v_lshrrev_b32 v8, 1, {LANE}\nv_mul_u32_u24 v8, {STR}, v8\nv_and_b32 v9, 1, {LANE}\nv_lshl_add_u32 v23, v9, 4, v8")
        a(f"s_mul_i32 {sSDG}, {sCB}, {32*STR}\ns_and_b32 s80, s2, 31\ns_lshl_b32 s80, s80, 5\ns_add_u32 {sSDG}, {sSDG}, s80")
        a(f"v_lshlrev_b32 {XF}, 16, {XF}")
    def c_touch():
        n = w7_begin()
        a("s_mov_b64 exec, 1")
        a(f"buffer_load_dword v{WA}, off, {sV}, {sKVB}")
        a(f"buffer_load_dword v{WA}, off, {sWO}, {sWOO}")
        a(f"buffer_load_dword v{WA}, off, {sWD}, {sWDO}")
        a(f"buffer_load_dword v{WA}, off, {sOUT}, 0")
        a("s_mov_b64 exec, -1")
        w7_end(n)
    deep = set(range(PK, PK + relax))
    p = PK + N
    for part in range(5): sched(p + part, c_gu(part))
    sched(p + 5, c_addr1)
    sched(kp, c_poll_issue)
    sched(kp + N + 2, c_poll_check)
    assert kp + N + 2 < vg
    sched(kg, c_qg_issue)
    sched(kg + N + 1, c_qg_use)
    assert kq > kg + N + 1
    sched(kq, c_readq)
    p = kq
    for t in range(8):
        p = max(p + 1, PK + 4 * t + 3 + N + 1)
        assert p <= PV_ + 4 * t
        sched(p, c_qk(t))
    for part in range(4):
        p += 1; sched(p, c_exp(part))
    sched(p + 1, c_addr2)
    sched(p + 4, c_el)
    sched(p + 4, c_gupub)
    deep |= set(range(p + 4, p + 4 + relax))
    p += 1
    for tau in range(3):
        p = max(p + 1, PV_ + 8 * tau + 7 + N + 1)
        sched(p, c_pv(tau))
        if tau == 0: assert vg > p
    sched(vg, c_g_issue)
    for p in range(PK, 80):
        for f in at.pop(p, []): f()
        if "now" in exp and p >= PW: tk[p] = a.vm
        else: issue(p, NW if p >= PW else 'w7free' if p in deep else N)
        stamp(f"p{p}")
    assert not at, at.keys()
    if exp:
        a.wait_vm(tk[71])
        stamp("PVend")
        a("s_waitcnt vmcnt(0)")
        stamp("end")
        a("s_branch L_fin")
    c_g_use()
    c_pv(3)()
    stamp("PVend")
    for e in range(4):
        for i in range(4):
            a(f"v_mov_b32_dpp v{WA+4*e+i}, v{WA+4*(e+4)+i} row_ror:8 row_mask:0xf bank_mask:0xc")
        for i in range(4):
            a(f"v_mul_f32 v{WA+4*e+i}, {FS}, v{WA+4*e+i}")
        a(f"ds_write_b128 v16, {q4(WA+4*e)} offset:{L_OW+128*e}")
    a("s_waitcnt lgkmcnt(0)\ns_barrier")
    stamp("B5")
    R = S
    for w in range(8): a(f"ds_read_b64 {q2(R+2*w)}, v17 offset:{L_OW+OWW*w}")
    a("s_waitcnt lgkmcnt(0)")
    for st in (8, 4, 2):
        for k in range(st): a(f"v_add_f32 v{R+k}, v{R+k}, v{R+st+k}")
    a(f"v_cvt_pk_bf16_f32 v{R}, v{R}, v{R+1}\nv_min_u32 v{R}, -2, v{R}")
    for k in (1, 2, 3): a(f"v_mov_b32_dpp v{R+k}, v{R} quad_perm:[{k},{k},{k},{k}] {DPP}")
    a("s_mov_b32 exec_lo, 0x11111111\ns_mov_b32 exec_hi, 0x11111111")
    a.vmem(f"buffer_store_dwordx4 {q4(R)}, v18, {sWS}, {sOPS} offen sc1")
    a("s_mov_b64 exec, -1")
    stamp("opub")
    GO = S + 8
    ol = [f"buffer_load_dwordx4 {q4(GO)}, v19, {sWS}, {sOG0} offen sc1",
          f"buffer_load_dwordx4 {q4(GO+4)}, v19, {sWS}, {sOG1} offen sc1"]
    for l in ol: to = a.vmem(l)
    c_wts(); c_h(); c_h2()
    BW = KV + 32
    a.wait_vm(tk[79])
    stamp("Wend")
    for e in range(8): transp(BW + 4 * e, WT, e)
    a.wait_vm(to)
    poll(ol, chk_sent(range(GO, GO + 8), 8), slp_tail)
    stamp("hop1")
    a(f"v_mfma_f32_16x16x32_bf16 {q4(R)}, {q4(A1)}, {q4(GO)}, 0")
    a(f"v_mfma_f32_16x16x32_bf16 {q4(R)}, {q4(A1+4)}, {q4(GO+4)}, {q4(R)}")
    a(f"ds_write_b128 v20, {q4(R)} offset:{L_ORED}")
    a("s_waitcnt lgkmcnt(0)\ns_barrier")
    stamp("B6")
    a(f"ds_read_b128 {q4(R)}, v21 offset:{L_ORED}\ns_waitcnt lgkmcnt(0)")
    for m in ("quad_perm:[1,0,3,2]", "quad_perm:[2,3,0,1]", "row_half_mirror"):
        for k in range(4): a(f"v_add_f32_dpp v{R+k}, v{R+k}, v{R+k} {m} {DPP}")
    for k in range(4): a(f"v_mul_f32 v{R+k}, v{R+k}, v{INVL}")
    a("s_mov_b32 exec_lo, 0x00010001\ns_mov_b32 exec_hi, 0x00010001")
    a(f"v_cvt_pk_bf16_f32 v{AO}, v{R}, v{R+1}\nv_cvt_pk_bf16_f32 v{AO+1}, v{R+2}, v{R+3}")
    a("s_mov_b64 exec, -1\ns_nop 1")
    for e in range(8): a(f"v_mfma_f32_16x16x32_bf16 {q4(WA+4*e)}, {q4(AO)}, {q4(BW+4*e)}, 0")
    a("s_mov_b64 exec, 0xffff")
    for e in range(8): a(f"ds_write_b64 v22, {q2(WA+4*e)} offset:{L_SW+8*e}")
    a("s_mov_b64 exec, -1")
    a("s_waitcnt lgkmcnt(0)\ns_barrier")
    stamp("B7")
    a("s_cmp_lg_u32 s3, 7\ns_cbranch_scc1 " + ("L_fin" if diag else "L_end"))
    for w in range(8): a(f"ds_read_b128 {q4(R+4*w)}, {VOFF} offset:{L_SW+1024*w}")
    a("s_waitcnt lgkmcnt(0)")
    for st in (16, 8, 4):
        for k in range(st): a(f"v_add_f32 v{R+k}, v{R+k}, v{R+st+k}")
    for k in range(4): a(f"v_min_u32 v{R+k}, -2, v{R+k}")
    a.vmem(f"buffer_store_dwordx4 {q4(R)}, {VOFF}, {sWS}, {sOWN} offen offset:{O_SD} sc1")
    stamp("spub")
    F = S + 8
    fl = [f"buffer_load_dwordx4 {q4(F)}, v23, {sWS}, {sSDG} offen offset:{O_SD} sc1"]
    tf = a.vmem(fl[0])
    a(f"v_and_b32 v10, 1, {LANE}\nv_lshlrev_b32 v10, 2, v10\nv_lshrrev_b32 v9, 5, {LANE}\nv_lshl_add_u32 v10, v9, 1, v10\ns_lshl_b32 s80, s2, 3")
    a.wait_vm(tf)
    poll(fl, chk_sent(range(F, F + 4), 8), slp_tail)
    stamp("hop2")
    a(f"v_permlane32_swap_b32 v{F}, v{F+2}\nv_permlane32_swap_b32 v{F+1}, v{F+3}")
    a(f"v_add_f32 v{F}, v{F}, v{F+2}\nv_add_f32 v{F+1}, v{F+1}, v{F+3}")
    a(f"v_permlane16_swap_b32 v{F}, v{F+1}\nv_add_f32 v{F}, v{F}, v{F+1}")
    for s in (2, 4, 8): a(f"v_add_f32_dpp v{F}, v{F}, v{F} row_ror:{s} {DPP}")
    a(f"v_mov_b32 v{F+1}, v{F}\nv_permlane16_swap_b32 v{F}, v{F+1}")
    a(f"v_cvt_pk_bf16_f32 v8, v{F}, v{F+1}")
    unpack(F, F + 1, 8)
    a(f"v_mul_f32 v8, {sL2E}, v{F+1}\nv_exp_f32 v8, -v8\nv_add_f32 v8, 1.0, v8\nv_rcp_f32 v8, v8\nv_mul_f32 v8, v8, v{F+1}")
    a(f"v_cvt_pk_bf16_f32 v8, v8, v8\nv_lshlrev_b32 v8, 16, v8\nv_mul_f32 v8, v8, v{F}")
    a(f"v_cvt_pk_bf16_f32 v8, v8, v8\nv_lshlrev_b32 v8, 16, v8\nv_add_f32 v8, v8, {XF}")
    if inject:
        import struct
        a(f"s_cmp_eq_u32 s2, 0\ns_cselect_b32 s81, {struct.unpack('<I', struct.pack('<f', inject))[0]}, 0\nv_add_f32 v8, s81, v8")
    a("v_cvt_pk_bf16_f32 v8, v8, v8")
    a("s_mov_b32 exec_lo, 3\ns_mov_b32 exec_hi, 3")
    a.vmem(f"buffer_store_short v8, v10, {sOUT}, s80 offen")
    a(f"s_cmp_lg_u32 s2, 0\ns_cbranch_scc1 L_noep\ns_mov_b64 exec, 1\nv_mov_b32 v9, {sTAG}\ns_mov_b32 s80, {EPO}")
    a(f"buffer_store_dword v9, off, {sWS}, s80 sc1\nL_noep:")
    if diag:
        stamp("fin")
        a("s_mov_b64 exec, -1\ns_waitcnt vmcnt(0)")
        stamp("end")
        a("L_fin:")
        a("s_waitcnt lgkmcnt(0)")
        for k in range(16): a(f"v_mov_b32 v{S+k}, s{84+k}")
        a(f"s_getreg_b32 s80, hwreg(HW_REG_XCC_ID)\nv_mov_b32 v{S+16}, s80\nv_mov_b32 v{S+17}, {sRETRY}")
        a(f"s_lshl_b32 s80, s2, 3\ns_add_u32 s80, s80, s3\ns_lshl_b32 s80, s80, 7\ns_add_u32 s80, s80, {STAMP_OFF}")
        a("s_mov_b64 exec, 1")
        for k in range(4): a(f"buffer_store_dwordx4 {q4(S+4*k)}, off, {sWS}, s80 offset:{16*k}")
        a(f"buffer_store_dwordx2 {q2(S+16)}, off, {sWS}, s80 offset:64")
    if spin:
        if spinx is not None:
            a(f"s_getreg_b32 s80, hwreg(HW_REG_XCC_ID)\ns_and_b32 s80, s80, 7\ns_cmp_lg_u32 s80, {spinx}\ns_cbranch_scc1 L_end")
        a(f"L_spin:\ns_sleep 2\ns_memrealtime s[86:87]\ns_waitcnt lgkmcnt(0)\ns_sub_u32 s86, s86, s84\ns_cmp_lt_u32 s86, {spin*100}\ns_cbranch_scc1 L_spin")
    a("L_end:\ns_endpgm")
    body = a.text()
    K = NAME + "_kernel"
    L = lds if lds else L_END
    out = HEADER + f"; @launch grid=(256,1,1) block=(512,1,1) lds={L}\n"
    out += f'.amdgcn_target "amdgcn-amd-amdhsa--gfx950"\n.text\n.globl {K}\n.p2align 8\n.type {K},@function\n{K}:\n'
    out += body
    out += "    .fill 2048, 4, 0xBF810000\n"
    out += f""".section .rodata,"a"
.p2align 6
.amdhsa_kernel {K}
  .amdhsa_next_free_vgpr 256
  .amdhsa_next_free_sgpr 102
  .amdhsa_accum_offset 256
  .amdhsa_group_segment_fixed_size 0
  .amdhsa_kernarg_size 96
  .amdhsa_user_sgpr_count 2
  .amdhsa_user_sgpr_kernarg_segment_ptr 1
  .amdhsa_system_sgpr_workgroup_id_x 1
.end_amdhsa_kernel
"""
    return out

if __name__ == "__main__":
    dst = sys.argv[1] if len(sys.argv) > 1 else f"cdna_kernels/{NAME}.s"
    kw = eval("dict(" + (sys.argv[2] if len(sys.argv) > 2 else "") + ")")
    open(dst, "w").write(gen(**kw))
```
